```python
import torch

def _softmax(x, axis=-1):
    return torch.softmax(x, dim=axis)
def _gelu(x):
    return torch.nn.functional.gelu(x, approximate="tanh")
def _silu(x):
    return torch.nn.functional.silu(x)
def _sigmoid(x):
    return torch.sigmoid(x)
def _layernorm(x, axis=-1, eps=1e-5):
    m = x.mean(dim=axis, keepdim=True)
    v = x.var(dim=axis, keepdim=True, unbiased=False)
    return (x - m) / torch.sqrt(v + eps)
def _scatter_add(tgt, idx, src, axis=0):
    return tgt.clone().index_add_(axis, idx, src)
def _segment_sum(src, seg, n):
    out = torch.zeros((n,) + src.shape[1:], dtype=src.dtype)
    return out.index_add_(0, seg, src)
def _pad(x, pw):
    flat = tuple(v for pair in reversed(pw) for v in pair)
    return torch.nn.functional.pad(x, flat)

kernel_name = 'parallel_sum__mha_block__dense_activation_gelu__prompt'

def setup_inputs():

    _w = (lambda a: (lambda t: t.to(torch.bfloat16) if t.is_floating_point() else t)(torch.as_tensor(a)))
    def _A_setup():
        B, S, D, H = 1, 2048, 512, 32
        return {
            "x": _w((lambda *s: torch.randn(*s, dtype=torch.bfloat16) * 0.05)(B, S, D)),
            "wqkv": _w((lambda *s: torch.randn(*s, dtype=torch.bfloat16) * 0.05)(D, 3 * D)),
            "wo": _w((lambda *s: torch.randn(*s, dtype=torch.bfloat16) * 0.05)(D, D)),
        }
    _A_in = _A_setup()

    def _B_setup():
        B, S, D, F = 1, 2048, 512, 1792
        return {
            "x": _w((lambda *s: torch.randn(*s, dtype=torch.bfloat16) * 0.05)(B, S, D)),
            "w1": _w((lambda *s: torch.randn(*s, dtype=torch.bfloat16) * 0.8)(D, F) * (D ** -0.5)),
            "b1": _w((lambda *s: torch.randn(*s, dtype=torch.bfloat16) * 12.8)(F) * 0.01),
            "w2": _w((lambda *s: torch.randn(*s, dtype=torch.bfloat16) * 0.8)(F, D) * (F ** -0.5)),
            "b2": _w((lambda *s: torch.randn(*s, dtype=torch.bfloat16) * 12.8)(D) * 0.01),
        }
    _B_in = _B_setup()

    return {
        "A_x": _A_in["x"],
        "A_wqkv": _A_in["wqkv"],
        "A_wo": _A_in["wo"],
        "B_x": _B_in["x"],
        "B_w1": _B_in["w1"],
        "B_b1": _B_in["b1"],
        "B_w2": _B_in["w2"],
        "B_b2": _B_in["b2"],
    }

def reference(A_x, A_wqkv, A_wo, B_x, B_w1, B_b1, B_w2, B_b2):
    def _A_ref(x, wqkv, wo):
        B, S, D = x.shape
        H = 32
        Dh = D // H
        qkv = (lambda x, *d: x.permute(*d))((x @ wqkv).reshape(B, S, 3, H, Dh), 2, 0, 3, 1, 4)
        q, k, v = qkv[0], qkv[1], qkv[2]
        scores = torch.einsum("bhqd,bhkd->bhqk", q, k) * (Dh ** -0.5)
        p = _softmax(scores, axis=-1)
        o = torch.einsum("bhqk,bhkd->bhqd", p, v)
        return (lambda x, *d: x.permute(*d))(o, 0, 2, 1, 3).reshape(B, S, D) @ wo

    def _B_ref(x, w1, b1, w2, b2):
        h = torch.einsum("bsd,df->bsf", x, w1) + b1
        h = _gelu(h)
        return torch.einsum("bsf,fd->bsd", h, w2) + b2

    x = A_x
    xn = _layernorm(x, axis=-1)
    return x + _A_ref(xn, A_wqkv, A_wo) + _B_ref(xn, B_w1, B_b1, B_w2, B_b2)
```

```python
class Asm:
    def __init__(self):
        self.lines = []
        self._uid = 0
    def __call__(self, s):
        for ln in s.strip("\n").split("\n"):
            self.lines.append("    " + ln.strip() if ln.strip() and not ln.strip().endswith(":") else ln.strip())
    def label(self, name):
        self.lines.append(f"{name}:")
    def uid(self, prefix="L"):
        self._uid += 1
        return f"{prefix}_{self._uid}"
    def comment(self, s):
        self.lines.append(f"    ; {s}")
    def text(self):
        return "\n".join(self.lines) + "\n"

def vr(a, n=1):
    return f"v{a}" if n == 1 else f"v[{a}:{a+n-1}]"
def sr(a, n=1):
    return f"s{a}" if n == 1 else f"s[{a}:{a+n-1}]"

QF  = 0x000000
KF  = 0x200000
VF  = 0x400000
OF  = 0x600000
Y2  = 0x800000
W2F = 0xA00000
WOF = 0xC00000
HF  = 0x1000000
WS_BYTES = 0x10000000
```

```python
from asmdsl import *

ONES_BF16 = 0x3f803f80
CQ = 0x3eb8aa3b

def emit_srd(A, s, lo, hi, size):
    A(f"""s_mov_b32 s{s}, s{lo}
s_and_b32 s{s+1}, s{hi}, 0xffff
s_mov_b32 s{s+2}, {hex(size)}
s_mov_b32 s{s+3}, 0x00020000""")

def k1(name="k1_kernel"):
    A = Asm()
    A.label(name)
    A(f"""
s_cmp_ge_u32 s2, 452
s_cbranch_scc1 {name}_exit
s_load_dwordx2 s[60:61], s[0:1], 0
s_load_dwordx2 s[62:63], s[0:1], 8
s_load_dwordx2 s[64:65], s[0:1], 32
s_load_dwordx2 s[66:67], s[0:1], 80
s_load_dwordx2 s[68:69], s[0:1], 40
s_load_dwordx2 s[70:71], s[0:1], 16
s_load_dwordx2 s[72:73], s[0:1], 48
v_and_b32 v1, 63, v0
v_lshrrev_b32 v2, 6, v0
s_nop 0
v_readfirstlane_b32 s20, v2
s_waitcnt lgkmcnt(0)
""")
    emit_srd(A, 4, 60, 61, 0x200000)
    emit_srd(A, 12, 66, 67, WS_BYTES)
    emit_srd(A, 16, 68, 69, 3584)
    A(f"""
s_cmp_ge_u32 s2, 416
s_cbranch_scc1 {name}_transposer
""")
    A("""
s_and_b32 s40, s2, 7
s_lshr_b32 s41, s2, 3
s_lshr_b32 s42, s40, 1
s_lshl_b32 s42, s42, 2
s_and_b32 s43, s41, 3
s_add_u32 s23, s42, s43          ; mt
s_and_b32 s44, s40, 1
s_mul_i32 s44, s44, 13
s_lshr_b32 s45, s41, 2
s_add_u32 s24, s44, s45          ; nt
s_lshr_b32 s21, s20, 1           ; wt
s_and_b32 s22, s20, 1            ; wf
s_cmp_ge_u32 s24, 12
s_mov_b32 s8, s62
s_cmov_b32 s8, s64
s_mov_b32 s9, s63
s_cmov_b32 s9, s65
s_mov_b32 s10, 0x180000
s_cmov_b32 s10, 0x1C0000
s_mov_b32 s25, 3072    ; ldw
s_cmov_b32 s25, 3584
s_mov_b32 s46, 0
s_cmov_b32 s46, 12
s_and_b32 s9, s9, 0xffff
s_mov_b32 s11, 0x00020000
s_sub_u32 s46, s24, s46
s_lshl_b32 s26, s46, 8           ; f0 bytes
""")
    A("""
v_and_b32 v2, 31, v1             ; t
v_lshrrev_b32 v3, 5, v1          ; hh
v_bfe_u32 v4, v2, 1, 3           ; swz
s_lshl_b32 s46, s21, 1
s_add_u32 s34, s46, s22
s_xor_b32 s35, s34, 1            ; tileX(1)
s_lshl_b32 s46, s22, 1
s_add_u32 s36, s46, s21
s_xor_b32 s37, s36, 1            ; ftW(1)
s_lshl_b32 s47, s34, 12
v_lshlrev_b32 v5, 7, v2
v_add_u32 v5, s47, v5
""")
    XA = lambda tt, ks: 16 + tt * 4 + ks
    for ks in range(4):
        A(f"""v_or_b32 v6, {2*ks}, v3
v_xor_b32 v6, v6, v4
v_lshl_add_u32 v{XA(0,ks)}, v6, 4, v5
v_xor_b32 v{XA(1,ks)}, 0x1000, v{XA(0,ks)}""")
    A("""
v_lshrrev_b32 v6, 4, v1          ; g
v_bfe_u32 v7, v1, 2, 2           ; r
v_and_b32 v8, 3, v1              ; c
v_lshrrev_b32 v9, 1, v6          ; g>>1
v_lshl_add_u32 v9, v9, 3, v7     ; 8*(g>>1)+r
v_lshlrev_b32 v9, 8, v9          ; *256
v_and_b32 v10, 1, v6
v_lshl_add_u32 v9, v10, 5, v9    ; +(g&1)*32
v_lshl_add_u32 v9, v8, 3, v9     ; +c*8
v_add_u32 v9, 0x4000, v9         ; +16384
v_xor_b32 v10, s36, v7
v_lshl_add_u32 v24, v10, 6, v9
v_xor_b32 v10, s37, v7
v_lshl_add_u32 v25, v10, 6, v9
""")
    A(f"""
v_lshrrev_b32 v6, 4, v1          ; l>>4
v_and_b32 v7, 7, v1
v_xor_b32 v8, v7, v6
v_lshrrev_b32 v9, 3, v1
v_lshlrev_b32 v9, 10, v9
v_lshl_add_u32 v26, v8, 4, v9
v_or_b32 v8, 4, v6
v_xor_b32 v8, v7, v8
v_lshl_add_u32 v27, v8, 4, v9
v_and_b32 v7, 15, v1
v_lshlrev_b32 v8, 2, v6
v_xor_b32 v8, v7, v8
v_lshlrev_b32 v8, 4, v8
v_mul_lo_u32 v9, v6, s25
v_add_u32 v28, v8, v9
v_mov_b32 v29, {hex(ONES_BF16)}
s_lshl_b32 s27, s23, 7
s_lshl_b32 s46, s20, 5
s_add_u32 s27, s27, s46
s_lshl_b32 s27, s27, 10
s_lshl_b32 s46, s20, 4
s_mul_i32 s28, s46, s25
s_add_u32 s28, s28, s26
s_lshl_b32 s29, s20, 12
s_lshl_b32 s30, s25, 2           ; 4*ldw
s_lshl_b32 s31, s25, 3           ; 8*ldw
s_mul_i32 s32, s25, 12           ; 12*ldw
s_lshl_b32 s33, s25, 6           ; 64*ldw
""")
    for i in range(64, 140):
        A(f"v_mov_b32 v{i}, 0")
    FR = {0: dict(X=32, W=40), 1: dict(X=48, W=56)}
    ACC = lambda tt, ft: 64 + (tt * 2 + ft) * 16

    def dma(stage):
        buf = stage & 1
        for i in range(4):
            A(f"""s_add_u32 m0, s29, {buf*32768 + i*1024}
s_add_u32 s46, s27, {i*8192 + stage*128}
buffer_load_dwordx4 v{26 + (i&1)}, s[4:7], s46 offen lds""")
        for i in range(4):
            off = ["0", "s30", "s31", "s32"][i]
            A(f"""s_add_u32 m0, s29, {buf*32768 + 16384 + i*1024}
s_add_u32 s46, s28, {off}
buffer_load_dwordx4 v28, s[8:11], s46 offen lds""")
        A("s_add_u32 s28, s28, s33")

    def reads(buf, ks, st):
        f = FR[st]
        for tt in range(2):
            A(f"ds_read_b128 {vr(f['X']+4*tt,4)}, v{XA(tt,ks)} offset:{buf*32768}")
        for ft in range(2):
            for h2 in range(2):
                A(f"ds_read_b64_tr_b16 {vr(f['W']+4*ft+2*h2,2)}, v{24+ft} offset:{buf*32768 + ks*4096 + h2*1024}")

    def compute(form, st):
        f = FR[st]
        m = 0
        for tt in range(2):
            for ft in range(2):
                xx = vr(f['X']+4*tt,4); ww = vr(f['W']+4*ft,4)
                a, b = (ww, xx) if form == 'CT' else (xx, ww)
                A(f"v_mfma_f32_32x32x16_bf16 {vr(ACC(tt,ft),16)}, {a}, {b}, {vr(ACC(tt,ft),16)}")
                for q in range(3):
                    idx = m * 3 + q
                    kind, rr = idx // 4, idx % 4
                    if kind == 0:
                        A(f"v_dot2c_f32_bf16 v{128+rr}, v{f['X']+rr}, v29")
                    elif kind == 1:
                        A(f"v_dot2c_f32_bf16 v{132+rr}, v{f['X']+rr}, v{f['X']+rr}")
                    else:
                        A(f"v_dot2c_f32_bf16 v{136+rr}, v{f['W']+rr}, v29")
                m += 1

    def mainloop(form):
        dma(0)
        for stage in range(8):
            buf = stage & 1
            A("s_waitcnt vmcnt(0)\ns_barrier")
            if stage < 7:
                dma(stage + 1)
            reads(buf, 0, 0)
            for ks in range(4):
                st = ks & 1
                if ks < 3:
                    reads(buf, ks + 1, st ^ 1)
                    A("s_waitcnt lgkmcnt(6)")
                else:
                    A("s_waitcnt lgkmcnt(0)")
                compute(form, st)

    def round_bf16(dst, src, tmp):
        A(f"v_cvt_pk_bf16_f32 v{tmp}, v{src}, v{src}\nv_lshlrev_b32 v{dst}, 16, v{tmp}")

    def half_sum(reg, tmp):
        A(f"""v_mov_b32 v{tmp}, v{reg}
s_nop 1
v_permlane32_swap_b32 v{reg}, v{tmp}
v_add_f32 v{reg}, v{reg}, v{tmp}""")

    def stats_epilogue():
        A("""
s_nop 15
v_add_f32 v128, v128, v129
v_add_f32 v130, v130, v131
v_add_f32 v132, v132, v133
v_add_f32 v134, v134, v135
v_add_f32 v136, v136, v137
v_add_f32 v138, v138, v139
v_add_f32 v128, v128, v130
v_add_f32 v132, v132, v134
v_add_f32 v136, v136, v138
""")
        half_sum(128, 32); half_sum(132, 33); half_sum(136, 34)
        A("""
v_mul_f32 v128, 0x3b000000, v128     ; mean
v_mul_f32 v132, 0x3b000000, v132     ; E[x^2]
v_fma_f32 v132, -v128, v128, v132    ; var
v_max_f32 v132, 0, v132
""")
        round_bf16(128, 128, 32)
        round_bf16(132, 132, 33)
        A("v_add_f32 v132, 0x3727c5ac, v132")
        round_bf16(132, 132, 33)
        A("v_sqrt_f32 v132, v132\ns_nop 0")
        round_bf16(132, 132, 33)
        A("""
v_rcp_f32 v132, v132                 ; rs
s_nop 0
v_mul_f32 v133, v128, v132           ; mr
s_lshl_b32 s46, s34, 8
v_lshl_add_u32 v32, v2, 3, s46
ds_write_b64 v32, v[132:133]
s_lshl_b32 s46, s36, 7
v_lshl_add_u32 v33, v2, 2, s46
ds_write_b32 v33, v136 offset:1024
s_waitcnt lgkmcnt(0)
s_barrier
""")

    def gelu(x, t1, t2):
        A(f"""v_mul_f32 v{t1}, v{x}, v{x}
v_fma_f32 v{t1}, v{t1}, v{GC1}, v{GC0}
v_mul_f32 v{t1}, v{t1}, v{x}
v_exp_f32 v{t1}, v{t1}
s_nop 0
v_add_f32 v{t1}, 1.0, v{t1}
v_rcp_f32 v{t1}, v{t1}
s_nop 0
v_mul_f32 v{x}, v{x}, v{t1}""")
    GC0, GC1 = 140, 141

    A(f"""
s_cmp_ge_u32 s24, 8
s_mov_b32 s46, 0
s_cmov_b32 s46, 1
s_cmp_lt_u32 s24, 12
s_mov_b32 s47, 0
s_cmov_b32 s47, 1
s_and_b32 s46, s46, s47
s_cmp_eq_u32 s46, 1
s_cbranch_scc1 {name}_vrole
""")
    mainloop('CT')
    stats_epilogue()
    A("""
s_lshl_b32 s46, s34, 8
v_lshl_add_u32 v36, v2, 3, s46
ds_read_b64 v[32:33], v36
s_lshl_b32 s46, s35, 8
v_lshl_add_u32 v36, v2, 3, s46
ds_read_b64 v[34:35], v36
v_lshlrev_b32 v37, 4, v3
s_lshl_b32 s46, s36, 7
v_add_u32 v38, s46, v37
s_lshl_b32 s46, s37, 7
v_add_u32 v39, s46, v37
""")
    for j in range(4):
        A(f"ds_read_b128 {vr(144+4*j,4)}, v38 offset:{1024 + 32*j}")
        A(f"ds_read_b128 {vr(160+4*j,4)}, v39 offset:{1024 + 32*j}")
    A(f"""
v_lshlrev_b32 v40, 4, v1
s_lshl_b32 s48, s23, 2              ; mt*4
s_waitcnt lgkmcnt(0)
s_cmp_ge_u32 s24, 12
s_cbranch_scc1 {name}_hrole
""")
    A(f"""
s_cmp_lt_u32 s24, 4
s_mov_b32 s49, 1.0
s_cmov_b32 s49, {hex(CQ)}
s_mov_b32 s50, {hex(KF)}
s_cmov_b32 s50, {hex(QF)}
s_mov_b32 s51, 4
s_cmov_b32 s51, 0
s_sub_u32 s51, s24, s51
s_lshl_b32 s51, s51, 3               ; *8 heads
v_mul_f32 v32, s49, v32
v_mul_f32 v33, s49, v33
v_mul_f32 v34, s49, v34
v_mul_f32 v35, s49, v35
""")
    for tt in range(2):
        for ft in range(2):
            a0 = ACC(tt, ft)
            for r in range(16):
                cs = 144 + 16*ft + r
                A(f"v_mul_f32 v{48+(r&7)}, v{33+2*tt}, v{cs}")
                A(f"v_fma_f32 v{a0+r}, v{a0+r}, v{32+2*tt}, -v{48+(r&7)}")
            for p in range(8):
                A(f"v_cvt_pk_bf16_f32 v{56+p}, v{a0+2*p}, v{a0+2*p+1}")
            A(f"""s_lshl_b32 s46, s{36+ft}, 1
s_add_u32 s46, s46, s51
s_lshl_b32 s46, s46, 16
s_add_u32 s47, s48, s{34+tt}
s_lshl_b32 s47, s47, 10
s_add_u32 s46, s46, s47
s_add_u32 s46, s46, s50
buffer_store_dwordx4 v[56:59], v40, s[12:15], s46 offen
s_add_u32 s46, s46, 0x10000
buffer_store_dwordx4 v[60:63], v40, s[12:15], s46 offen""")
    A("s_endpgm")
    A.label(f"{name}_hrole")
    A("""
v_lshlrev_b32 v37, 3, v3
s_lshl_b32 s46, s36, 6
s_add_u32 s46, s46, s26
v_add_u32 v38, s46, v37
s_lshl_b32 s46, s37, 6
s_add_u32 s46, s46, s26
v_add_u32 v39, s46, v37
""")
    for j in range(4):
        A(f"buffer_load_dwordx2 {vr(176+2*j,2)}, v38, s[16:19], 0 offen offset:{16*j}")
        A(f"buffer_load_dwordx2 {vr(184+2*j,2)}, v39, s[16:19], 0 offen offset:{16*j}")
    A(f"""
v_mov_b32 v{GC0}, 0xc0135761
v_mov_b32 v{GC1}, 0xbdd2d3e8
s_waitcnt vmcnt(0)
""")
    for ft in range(2):
        for p in range(8):
            A(f"v_lshlrev_b32 v{192+2*p}, 16, v{176+8*ft+p}")
            A(f"v_and_b32 v{192+2*p+1}, 0xffff0000, v{176+8*ft+p}")
        for tt in range(2):
            a0 = ACC(tt, ft)
            for r in range(16):
                cs = 144 + 16*ft + r
                A(f"v_fma_f32 v{48}, -v{33+2*tt}, v{cs}, v{192+r}")
                A(f"v_fma_f32 v{a0+r}, v{a0+r}, v{32+2*tt}, v{48}")
                gelu(a0 + r, 49, 50)
            for p in range(8):
                A(f"v_cvt_pk_bf16_f32 v{56+p}, v{a0+2*p}, v{a0+2*p+1}")
            A(f"""s_add_u32 s47, s48, s{34+tt}
s_mul_i32 s47, s47, 112
s_lshr_b32 s46, s26, 5
s_add_u32 s47, s47, s46
s_lshl_b32 s46, s{36+ft}, 1
s_add_u32 s47, s47, s46
s_lshl_b32 s47, s47, 10
s_add_u32 s47, s47, {hex(HF)}
buffer_store_dwordx4 v[56:59], v40, s[12:15], s47 offen
buffer_store_dwordx4 v[60:63], v40, s[12:15], s47 offen offset:1024""")
    A("s_endpgm")
    A.label(f"{name}_vrole")
    mainloop('C')
    stats_epilogue()
    A("""
s_lshl_b32 s46, s36, 7
v_lshl_add_u32 v36, v2, 2, s46
ds_read_b32 v32, v36 offset:1024
s_lshl_b32 s46, s37, 7
v_lshl_add_u32 v36, v2, 2, s46
ds_read_b32 v33, v36 offset:1024
v_lshlrev_b32 v37, 5, v3
s_lshl_b32 s46, s34, 8
v_add_u32 v38, s46, v37
s_lshl_b32 s46, s35, 8
v_add_u32 v39, s46, v37
""")
    for j in range(4):
        for h in range(2):
            A(f"ds_read_b128 {vr(144+8*j+4*h,4)}, v38 offset:{64*j+16*h}")
            A(f"ds_read_b128 {vr(176+8*j+4*h,4)}, v39 offset:{64*j+16*h}")
    A(f"""
v_lshrrev_b32 v40, 4, v2
v_lshlrev_b32 v40, 16, v40
v_lshl_add_u32 v40, v3, 8, v40
v_and_b32 v41, 15, v2
v_lshl_add_u32 v40, v41, 4, v40
s_lshl_b32 s48, s23, 2
s_sub_u32 s51, s24, 8
s_lshl_b32 s51, s51, 3
s_waitcnt lgkmcnt(0)
""")
    for tt in range(2):
        sb = 144 if tt == 0 else 176
        for ft in range(2):
            a0 = ACC(tt, ft)
            for r in range(16):
                rs = sb + 2*r; mr = sb + 2*r + 1
                A(f"v_mul_f32 v{48+(r&7)}, v{mr}, v{32+ft}")
                A(f"v_fma_f32 v{a0+r}, v{a0+r}, v{rs}, -v{48+(r&7)}")
            for p in range(8):
                A(f"v_cvt_pk_bf16_f32 v{56+p}, v{a0+2*p}, v{a0+2*p+1}")
            A(f"""s_lshl_b32 s46, s{36+ft}, 1
s_add_u32 s46, s46, s51
s_lshl_b32 s46, s46, 16
s_add_u32 s47, s48, s{34+tt}
s_lshl_b32 s47, s47, 10
s_add_u32 s46, s46, s47
s_add_u32 s46, s46, {hex(VF)}
buffer_store_dwordx4 v[56:59], v40, s[12:15], s46 offen
buffer_store_dwordx4 v[60:63], v40, s[12:15], s46 offen offset:512""")
    A("s_endpgm")

    A.label(f"{name}_transposer")
    A(f"""
s_sub_u32 s40, s2, 416
s_cmp_ge_u32 s40, 28
s_mov_b32 s8, s72
s_cmov_b32 s8, s70
s_mov_b32 s9, s73
s_cmov_b32 s9, s71
s_mov_b32 s10, 0x1C0000
s_cmov_b32 s10, 0x80000
s_mov_b32 s41, 0
s_cmov_b32 s41, 28
s_mov_b32 s42, {hex(W2F)}
s_cmov_b32 s42, {hex(WOF)}
s_mov_b32 s43, 112
s_cmov_b32 s43, 32
s_and_b32 s9, s9, 0xffff
s_mov_b32 s11, 0x00020000
s_sub_u32 s40, s40, s41
v_lshlrev_b32 v4, 4, v1
v_xor_b32 v5, 64, v4
v_xor_b32 v6, 128, v4
v_xor_b32 v7, 192, v4
s_lshl_b32 s44, s40, 6
s_lshl_b32 s45, s20, 4
s_add_u32 s44, s44, s45
s_lshl_b32 s44, s44, 10
s_lshl_b32 s45, s20, 14
""")
    for i in range(16):
        A(f"""s_add_u32 m0, s45, {i*1024}
s_add_u32 s46, s44, {i*1024}
buffer_load_dwordx4 v{4+(i&3)}, s[8:11], s46 offen lds""")
    A("""
v_lshrrev_b32 v8, 5, v1             ; hh
v_bfe_u32 v9, v1, 4, 1              ; fsub
v_bfe_u32 v10, v1, 2, 2             ; r
v_and_b32 v11, 3, v1                ; c
v_lshl_add_u32 v12, v8, 2, v10      ; 4hh + r
v_lshlrev_b32 v12, 10, v12
v_add_u32 v12, s45, v12
v_lshl_add_u32 v12, v9, 5, v12
v_lshl_add_u32 v12, v11, 3, v12
""")
    for q in range(4):
        A(f"v_xor_b32 v13, {q}, v10\nv_lshl_add_u32 v{16+q}, v13, 6, v12")
    A("""
v_lshlrev_b32 v14, 4, v1
s_lshl_b32 s47, s40, 2
s_add_u32 s47, s47, s20             ; kstep_g
s_waitcnt vmcnt(0)
""")
    for ft in range(16):
        b = 32 + 4*(ft & 3)
        A(f"ds_read_b64_tr_b16 {vr(b,2)}, v{16+(ft&3)} offset:{(ft>>2)*256}")
        A(f"ds_read_b64_tr_b16 {vr(b+2,2)}, v{16+(ft&3)} offset:{(ft>>2)*256 + 8192}")
        A(f"""s_mul_i32 s48, s43, {ft}
s_add_u32 s48, s48, s47
s_lshl_b32 s48, s48, 10
s_add_u32 s48, s48, s42
s_waitcnt lgkmcnt(0)
buffer_store_dwordx4 {vr(b,4)}, v14, s[12:15], s48 offen""")
    A.label(f"{name}_exit")
    A("s_endpgm")
    return A.text()

if __name__ == "__main__":
    print(k1())
```

```python
from asmdsl import *
from k1 import emit_srd

NAME = "k2_kernel"

def k2(name=NAME):
    A = Asm()
    A.label(name)
    A(f"""
s_cmp_ge_u32 s2, 256
s_cbranch_scc1 {name}_exit
s_load_dwordx2 s[66:67], s[0:1], 80
s_load_dwordx2 s[68:69], s[0:1], 56
v_and_b32 v1, 63, v0
v_lshrrev_b32 v2, 6, v0
s_nop 0
v_readfirstlane_b32 s20, v2
v_lshlrev_b32 v3, 4, v1            ; lane*16
s_and_b32 s21, s2, 31              ; head
s_lshr_b32 s22, s2, 5              ; qb
s_waitcnt lgkmcnt(0)
""")
    emit_srd(A, 12, 66, 67, WS_BYTES)
    emit_srd(A, 16, 68, 69, 1024)
    A(f"""
s_cmp_ge_u32 s20, 8
s_cbranch_scc1 {name}_ffn
""")
    A(f"""
s_lshl_b32 s23, s21, 16            ; head*65536
s_lshl_b32 s24, s20, 10            ; w*1024
s_add_u32 s25, s23, s24
s_add_u32 s26, s25, {hex(KF)}
s_add_u32 s27, s25, {hex(VF)}
""")
    for c in range(8):
        A(f"""s_add_u32 m0, s24, {c*8192}
s_add_u32 s28, s26, {c*8192}
buffer_load_dwordx4 v3, s[12:15], s28 offen lds
s_add_u32 m0, s24, {65536 + c*8192}
s_add_u32 s28, s27, {c*8192}
buffer_load_dwordx4 v3, s[12:15], s28 offen lds""")
    A(f"""
s_lshl_b32 s29, s22, 3
s_add_u32 s29, s29, s20            ; qtile
s_lshl_b32 s30, s29, 10
s_add_u32 s30, s30, s23
s_add_u32 s30, s30, {hex(QF)}
buffer_load_dwordx4 v[4:7], v3, s[12:15], s30 offen
""")
    VB = [[100, 104], [108, 112]]
    KB = [92, 96]
    SB = [32, 48]
    O = 64; P = 80; E = 84
    A("""
v_and_b32 v8, 31, v1               ; m
v_lshrrev_b32 v9, 5, v1            ; hh
v_cmp_eq_u32 vcc, 16, v8
s_mov_b64 s[30:31], vcc
v_cmp_eq_u32 vcc, 20, v8
s_or_b64 vcc, vcc, s[30:31]
v_mov_b32 v10, 0x3f803f80
s_nop 1
v_cndmask_b32 v10, 0, v10, vcc
""")
    for r in range(100, 116):
        A(f"v_mov_b32 v{r}, v10")
    for r in range(O, O + 16):
        A(f"v_mov_b32 v{r}, 0")
    A("""
v_mov_b32 v116, v3                 ; K addr
v_and_b32 v11, 15, v8
v_lshlrev_b32 v117, 4, v11
v_lshl_add_u32 v117, v9, 8, v117
v_add_u32 v117, 0x10000, v117      ; V addr
s_mov_b32 s34, 0x0000ffff
s_mov_b32 s35, 0x0000ffff
s_waitcnt vmcnt(0)
s_barrier
""")
    A(f"""
ds_read_b128 {vr(KB[0],4)}, v116
ds_read_b128 {vr(KB[1],4)}, v116 offset:1024
s_mov_b64 exec, s[34:35]
ds_read_b128 {vr(VB[0][0],4)}, v117
ds_read_b128 {vr(VB[0][1],4)}, v117 offset:512
s_mov_b64 exec, -1
s_waitcnt lgkmcnt(3)
v_mfma_f32_32x32x16_bf16 {vr(SB[1],16)}, {vr(KB[0],4)}, v[4:7], 0
s_nop 15
s_nop 3
v_max3_f32 v8, v{SB[1]}, v{SB[1]+1}, v{SB[1]+2}
""")
    for r in range(3, 15, 2):
        A(f"v_max3_f32 v8, v8, v{SB[1]+r}, v{SB[1]+r+1}")
    A(f"""v_max_f32 v8, v8, v{SB[1]+15}
v_mov_b32 v9, v8
s_nop 1
v_permlane32_swap_b32 v8, v9
v_max_f32 v8, v8, v9
v_sub_f32 v8, 0, v8
""")
    for r in range(16, 32):
        A(f"v_mov_b32 v{r}, v8")
    A(f"""s_nop 1
v_mfma_f32_32x32x16_bf16 {vr(SB[0],16)}, {vr(KB[0],4)}, v[4:7], v[16:31]
s_mov_b32 s36, 16
""")
    A.label(f"{name}_aloop")
    for u in range(4):
        cur = u & 1; nxt = cur ^ 1
        s = SB[cur]
        A(f"""s_waitcnt lgkmcnt(2)
v_mfma_f32_32x32x16_bf16 {vr(SB[nxt],16)}, {vr(KB[nxt],4)}, v[4:7], v[16:31]
ds_read_b128 {vr(KB[cur],4)}, v116 offset:{(u+2)*1024}
s_mov_b64 exec, s[34:35]
ds_read_b128 {vr(VB[nxt][0],4)}, v117 offset:{(u+1)*1024}
ds_read_b128 {vr(VB[nxt][1],4)}, v117 offset:{(u+1)*1024+512}
s_mov_b64 exec, -1
v_exp_f32 v{E}, v{s}
v_exp_f32 v{E+1}, v{s+1}
v_exp_f32 v{E+2}, v{s+2}
v_exp_f32 v{E+3}, v{s+3}
v_exp_f32 v{E+4}, v{s+4}
v_cvt_pk_bf16_f32 v{P}, v{E}, v{E+1}
v_exp_f32 v{E+5}, v{s+5}
v_cvt_pk_bf16_f32 v{P+1}, v{E+2}, v{E+3}
v_exp_f32 v{E+6}, v{s+6}
v_exp_f32 v{E+7}, v{s+7}
v_cvt_pk_bf16_f32 v{P+2}, v{E+4}, v{E+5}
v_cvt_pk_bf16_f32 v{P+3}, v{E+6}, v{E+7}
v_exp_f32 v{E}, v{s+8}
v_exp_f32 v{E+1}, v{s+9}
s_waitcnt lgkmcnt(3)
v_mfma_f32_32x32x16_bf16 {vr(O,16)}, {vr(VB[cur][0],4)}, {vr(P,4)}, {vr(O,16)}
v_exp_f32 v{E+2}, v{s+10}
v_exp_f32 v{E+3}, v{s+11}
v_exp_f32 v{E+4}, v{s+12}
v_cvt_pk_bf16_f32 v{P+4}, v{E}, v{E+1}
v_exp_f32 v{E+5}, v{s+13}
v_cvt_pk_bf16_f32 v{P+5}, v{E+2}, v{E+3}
v_exp_f32 v{E+6}, v{s+14}
v_exp_f32 v{E+7}, v{s+15}
v_cvt_pk_bf16_f32 v{P+6}, v{E+4}, v{E+5}
v_cvt_pk_bf16_f32 v{P+7}, v{E+6}, v{E+7}
s_nop 1
v_mfma_f32_32x32x16_bf16 {vr(O,16)}, {vr(VB[cur][1],4)}, {vr(P+4,4)}, {vr(O,16)}""")
    A(f"""v_add_u32 v116, 0x1000, v116
v_add_u32 v117, 0x1000, v117
s_sub_u32 s36, s36, 1
s_cmp_lg_u32 s36, 0
s_cbranch_scc1 {name}_aloop
s_nop 15
s_nop 3
; normalize: l = O[8]
v_rcp_f32 v8, v{O+8}
s_nop 0
""")
    for r in range(8):
        A(f"v_mul_f32 v{O+r}, v{O+r}, v8")
    for p in range(4):
        A(f"v_cvt_pk_bf16_f32 v{P+p}, v{O+2*p}, v{O+2*p+1}")
    A(f"""
s_lshl_b32 s30, s29, 5
s_add_u32 s30, s30, s21
s_lshl_b32 s30, s30, 10
s_add_u32 s30, s30, {hex(OF)}
buffer_store_dwordx4 {vr(P,4)}, v3, s[12:15], s30 offen
s_endpgm
""")
    A.label(f"{name}_ffn")
    A(f"""
s_sub_u32 s23, s20, 8
s_lshr_b32 s24, s23, 1             ; tt
s_and_b32 s25, s23, 1              ; ft
s_and_b32 s26, s2, 7
s_bfe_u32 s27, s2, 0x20003         ; (id>>3)&3
s_lshl_b32 s27, s27, 3
s_add_u32 s26, s26, s27            ; tb 0..31
s_lshr_b32 s27, s2, 5              ; fb 0..7
s_lshl_b32 s26, s26, 1
s_add_u32 s26, s26, s24            ; ttile
s_lshl_b32 s27, s27, 1
s_add_u32 s27, s27, s25            ; ftile
s_mul_i32 s28, s26, {112*1024}
s_add_u32 s28, s28, {hex(HF)}
s_mul_i32 s29, s27, {112*1024}
s_add_u32 s29, s29, {hex(W2F)}
""")
    ACC = 64; XR = 80; WR = 112; D = 8
    for r in range(16):
        A(f"v_mov_b32 v{ACC+r}, 0")
    for i in range(D):
        A(f"""buffer_load_dwordx4 {vr(XR+4*i,4)}, v3, s[12:15], s28 offen offset:{i*1024 if i<4 else 0}""" if i < 4 else
          f"""s_add_u32 s30, s28, {i*1024}
buffer_load_dwordx4 {vr(XR+4*i,4)}, v3, s[12:15], s30 offen""")
        A(f"""s_add_u32 s30, s29, {i*1024}
buffer_load_dwordx4 {vr(WR+4*i,4)}, v3, s[12:15], s30 offen""")
    A("s_barrier")
    A(f"""s_add_u32 s28, s28, {D*1024}
s_add_u32 s29, s29, {D*1024}
s_mov_b32 s36, 13""")
    A.label(f"{name}_floop")
    for i in range(D):
        A(f"""s_waitcnt vmcnt({2*D-2})
v_mfma_f32_32x32x16_bf16 {vr(ACC,16)}, {vr(WR+4*i,4)}, {vr(XR+4*i,4)}, {vr(ACC,16)}
s_add_u32 s30, s28, {i*1024}
buffer_load_dwordx4 {vr(XR+4*i,4)}, v3, s[12:15], s30 offen
s_add_u32 s30, s29, {i*1024}
buffer_load_dwordx4 {vr(WR+4*i,4)}, v3, s[12:15], s30 offen""")
    A(f"""s_add_u32 s28, s28, {D*1024}
s_add_u32 s29, s29, {D*1024}
s_sub_u32 s36, s36, 1
s_cmp_lg_u32 s36, 0
s_cbranch_scc1 {name}_floop
""")
    for i in range(D):
        A(f"""s_waitcnt vmcnt({2*(D-1-i)})
v_mfma_f32_32x32x16_bf16 {vr(ACC,16)}, {vr(WR+4*i,4)}, {vr(XR+4*i,4)}, {vr(ACC,16)}""")
    A(f"""
v_lshrrev_b32 v9, 5, v1            ; hh
v_and_b32 v8, 31, v1               ; t
v_lshlrev_b32 v10, 3, v9
s_lshl_b32 s30, s27, 6
v_add_u32 v10, s30, v10
""")
    for j in range(4):
        A(f"buffer_load_dwordx2 {vr(96+2*j,2)}, v10, s[16:19], 0 offen offset:{16*j}")
    A("s_lshl_b32 s31, s26, 5\nv_add_u32 v11, s31, v8\nv_lshlrev_b32 v11, 10, v11\nv_lshl_add_u32 v11, v9, 4, v11\ns_lshl_b32 s30, s27, 6\nv_add_u32 v11, s30, v11")
    A("s_nop 7\ns_nop 7")
    for p in range(8):
        A(f"v_cvt_pk_bf16_f32 v{80+p}, v{ACC+2*p}, v{ACC+2*p+1}")
    A("s_waitcnt vmcnt(0)")
    for p in range(8):
        A(f"""v_lshlrev_b32 v{ACC+2*p}, 16, v{80+p}
v_and_b32 v{ACC+2*p+1}, 0xffff0000, v{80+p}
v_lshlrev_b32 v88, 16, v{96+p}
v_and_b32 v89, 0xffff0000, v{96+p}
v_add_f32 v{ACC+2*p}, v{ACC+2*p}, v88
v_add_f32 v{ACC+2*p+1}, v{ACC+2*p+1}, v89""")
    for p in range(8):
        A(f"v_cvt_pk_bf16_f32 v{80+p}, v{ACC+2*p}, v{ACC+2*p+1}")
    A(f"""s_nop 1
v_permlane32_swap_b32 v80, v82
v_permlane32_swap_b32 v81, v83
v_permlane32_swap_b32 v84, v86
v_permlane32_swap_b32 v85, v87
s_nop 1
s_mov_b32 s30, {hex(Y2)}
buffer_store_dwordx4 v[80:83], v11, s[12:15], s30 offen
buffer_store_dwordx4 v[84:87], v11, s[12:15], s30 offen offset:32
""")
    A.label(f"{name}_exit")
    A("s_endpgm")
    return A.text()

def entry():
    return (NAME, k2(), 256, 768, 135168, 144)
```

```python
from asmdsl import *
from k1 import emit_srd
NAME = "k3_kernel"
def k3(name=NAME):
    A = Asm()
    A.label(name)
    A(f"""
s_cmp_ge_u32 s2, 256
s_cbranch_scc1 {name}_exit
s_load_dwordx2 s[66:67], s[0:1], 80
s_load_dwordx2 s[68:69], s[0:1], 0
s_load_dwordx2 s[70:71], s[0:1], 64
v_and_b32 v1, 63, v0
v_lshrrev_b32 v2, 6, v0
s_nop 0
v_readfirstlane_b32 s20, v2
v_lshlrev_b32 v3, 4, v1
s_waitcnt lgkmcnt(0)
""")
    emit_srd(A, 12, 66, 67, WS_BYTES)
    emit_srd(A, 16, 68, 69, 0x200000)
    emit_srd(A, 4, 70, 71, 0x200000)
    A(f"""
s_lshr_b32 s24, s20, 1
s_and_b32 s25, s20, 1
s_and_b32 s26, s2, 7
s_bfe_u32 s27, s2, 0x20003
s_lshl_b32 s27, s27, 3
s_add_u32 s26, s26, s27
s_lshr_b32 s27, s2, 5
s_lshl_b32 s26, s26, 1
s_add_u32 s26, s26, s24            ; ttile
s_lshl_b32 s27, s27, 1
s_add_u32 s27, s27, s25            ; ftile
s_lshl_b32 s28, s26, 15
s_add_u32 s28, s28, {hex(OF)}
s_lshl_b32 s29, s27, 15
s_add_u32 s29, s29, {hex(WOF)}
""")
    ACC = 16; XR = 32; WR = 96
    for r in range(16):
        A(f"v_mov_b32 v{ACC+r}, 0")
    for half in range(2):
        for i in range(16):
            k = half * 16 + i
            A(f"""s_add_u32 s30, s28, {k*1024}
buffer_load_dwordx4 {vr(XR+4*i,4)}, v3, s[12:15], s30 offen
s_add_u32 s30, s29, {k*1024}
buffer_load_dwordx4 {vr(WR+4*i,4)}, v3, s[12:15], s30 offen""")
        if half == 1:
            A("""v_lshrrev_b32 v9, 5, v1
v_and_b32 v8, 31, v1
s_lshl_b32 s31, s26, 5
v_add_u32 v11, s31, v8
v_lshlrev_b32 v11, 10, v11
v_lshl_add_u32 v11, v9, 4, v11
s_lshl_b32 s30, s27, 6
v_add_u32 v11, s30, v11
buffer_load_dwordx4 v[160:163], v11, s[16:19], 0 offen
buffer_load_dwordx4 v[164:167], v11, s[16:19], 0 offen offset:32""")
            A(f"""s_mov_b32 s30, {hex(Y2)}
buffer_load_dwordx4 v[168:171], v11, s[12:15], s30 offen
buffer_load_dwordx4 v[172:175], v11, s[12:15], s30 offen offset:32""")
        extra = 4 if half == 1 else 0
        for i in range(16):
            A(f"""s_waitcnt vmcnt({30 - 2*i + extra})
v_mfma_f32_32x32x16_bf16 {vr(ACC,16)}, {vr(WR+4*i,4)}, {vr(XR+4*i,4)}, {vr(ACC,16)}""")
    A("s_nop 15\ns_nop 3")
    for p in range(8):
        A(f"v_cvt_pk_bf16_f32 v{80+p}, v{ACC+2*p}, v{ACC+2*p+1}")
    A("""s_nop 1
v_permlane32_swap_b32 v80, v82
v_permlane32_swap_b32 v81, v83
v_permlane32_swap_b32 v84, v86
v_permlane32_swap_b32 v85, v87
s_waitcnt vmcnt(0)
""")
    for p in range(8):
        a, x, y = 80 + p, 160 + p, 168 + p
        A(f"""v_lshlrev_b32 v88, 16, v{a}
v_and_b32 v89, 0xffff0000, v{a}
v_lshlrev_b32 v90, 16, v{x}
v_and_b32 v91, 0xffff0000, v{x}
v_add_f32 v88, v88, v90
v_add_f32 v89, v89, v91
v_cvt_pk_bf16_f32 v92, v88, v89
v_lshlrev_b32 v88, 16, v92
v_and_b32 v89, 0xffff0000, v92
v_lshlrev_b32 v90, 16, v{y}
v_and_b32 v91, 0xffff0000, v{y}
v_add_f32 v88, v88, v90
v_add_f32 v89, v89, v91
v_cvt_pk_bf16_f32 v{a}, v88, v89""")
    A("""s_nop 1
buffer_store_dwordx4 v[80:83], v11, s[4:7], 0 offen
buffer_store_dwordx4 v[84:87], v11, s[4:7], 0 offen offset:32
""")
    A.label(f"{name}_exit")
    A("s_endpgm")
    return A.text()
def entry():
    return (NAME, k3(), 256, 256, 0, 176)
```

```python
import sys
sys.path.insert(0, "dev")
from asmdsl import *
import importlib

HEADER = """; Kernarg layout for this problem (88 bytes, ptrs only, base s[0:1]):
"""

def desc(name, vgpr, sgpr=102):
    acc = (vgpr + 3) // 4 * 4
    return f""".amdhsa_kernel {name}
  .amdhsa_next_free_vgpr {vgpr}
  .amdhsa_next_free_sgpr {sgpr}
  .amdhsa_accum_offset {acc}
  .amdhsa_group_segment_fixed_size 0
  .amdhsa_kernarg_size 88
  .amdhsa_user_sgpr_count 2
  .amdhsa_user_sgpr_kernarg_segment_ptr 1
  .amdhsa_system_sgpr_workgroup_id_x 1
.end_amdhsa_kernel
"""

def build(kernels):
    out = HEADER
    for (label, text, grid, block, lds, vgpr) in kernels:
        out += f"; @launch kernel={label} grid=({grid},1,1) block=({block},1,1) lds={lds}\n"
    out += '.amdgcn_target "amdgcn-amd-amdhsa--gfx950"\n.text\n'
    for (label, text, grid, block, lds, vgpr) in kernels:
        out += f".globl {label}\n.p2align 8\n.type {label},@function\n" + text
    out += '.section .rodata,"a"\n.p2align 6\n'
    for (label, text, grid, block, lds, vgpr) in kernels:
        out += desc(label, vgpr)
    return out

if __name__ == "__main__":
    import k1
    ks = [("k1_kernel", k1.k1("k1_kernel"), 452, 256, 65536, 208)]
    try:
        import k2
        ks.append(k2.entry())
        import k3
        ks.append(k3.entry())
    except ImportError as e:
        print("note:", e, file=sys.stderr)
    dst = sys.argv[1] if len(sys.argv) > 1 else "parallel_sum__mha_block__dense_activation_gelu__prompt.s"
    open(dst, "w").write(build(ks))
    print("wrote", dst)
```

```python
class Asm:
    def __init__(self):
        self.lines = []
        self._uid = 0
    def __call__(self, s):
        for ln in s.strip("\n").split("\n"):
            self.lines.append("    " + ln.strip() if ln.strip() and not ln.strip().endswith(":") else ln.strip())
    def label(self, name):
        self.lines.append(f"{name}:")
    def uid(self, prefix="L"):
        self._uid += 1
        return f"{prefix}_{self._uid}"
    def comment(self, s):
        self.lines.append(f"    ; {s}")
    def text(self):
        return "\n".join(self.lines) + "\n"

def vr(a, n=1):
    return f"v{a}" if n == 1 else f"v[{a}:{a+n-1}]"
def sr(a, n=1):
    return f"s{a}" if n == 1 else f"s[{a}:{a+n-1}]"

QF  = 0x000000
KF  = 0x200000
VF  = 0x400000
OF  = 0x600000
Y2  = 0x800000
W2F = 0xA00000
WOF = 0xC00000
HF  = 0x1000000
WS_BYTES = 0x10000000
XF  = 0x1800000
ST  = 0x1A00000
W1F = 0x1C00000
CSG = 0x1A10000
```

```python
from asmdsl import *

CQ = 0x3eb8aa3b

def emit_srd(A, s, lo, hi, size):
    A(f"""s_mov_b32 s{s}, s{lo}
s_and_b32 s{s+1}, s{hi}, 0xffff
s_mov_b32 s{s+2}, {hex(size)}
s_mov_b32 s{s+3}, 0x00020000""")

SLOT = 49152
STAT, CSO, B1O = 0, 2048, 2560

def k1(name="k1_kernel", timing=False, noepi=False):
    A = Asm()
    A.label(name)
    A(f"""
s_cmp_ge_u32 s2, 244
s_cbranch_scc1 {name}_exit
s_load_dwordx2 s[60:61], s[0:1], 0
s_load_dwordx2 s[62:63], s[0:1], 8
s_load_dwordx2 s[64:65], s[0:1], 32
s_load_dwordx2 s[66:67], s[0:1], 80
s_load_dwordx2 s[68:69], s[0:1], 40
s_load_dwordx2 s[70:71], s[0:1], 16
s_load_dwordx2 s[72:73], s[0:1], 48
v_and_b32 v1, 63, v0
v_lshrrev_b32 v2, 6, v0
s_nop 0
v_readfirstlane_b32 s20, v2
s_waitcnt lgkmcnt(0)
""")
    emit_srd(A, 4, 60, 61, 0x200000)
    emit_srd(A, 12, 66, 67, WS_BYTES)
    emit_srd(A, 16, 68, 69, 3584)
    def stamp(i):
        if not timing: return
        lab = f"{name}_stx{i}_{len(A.lines)}"
        A(f"""s_memrealtime s[90:91]
s_waitcnt lgkmcnt(0)
s_lshl_b32 s92, s2, 6
s_add_u32 s92, s92, {0xF000000 + i*4}
v_mov_b32 v14, s90
v_mov_b32 v15, 0
s_cmp_eq_u32 s20, 0
s_cbranch_scc0 {lab}
buffer_store_dword v14, v15, s[12:15], s92 offen""")
        A.label(lab)
    A(f"""
s_cmp_ge_u32 s2, 208
s_cbranch_scc1 {name}_transposer
s_and_b32 s40, s2, 7
s_lshr_b32 s41, s2, 3
s_lshr_b32 s42, s40, 1
s_lshl_b32 s42, s42, 1
s_and_b32 s43, s41, 1
s_add_u32 s23, s42, s43          ; mt (0..7)
s_and_b32 s44, s40, 1
s_mul_i32 s44, s44, 13
s_lshr_b32 s45, s41, 1
s_add_u32 s24, s44, s45          ; nt
s_lshr_b32 s21, s20, 1           ; wt
s_and_b32 s22, s20, 1            ; wf
s_cmp_ge_u32 s24, 12
s_mov_b32 s8, s62
s_cmov_b32 s8, s64
s_mov_b32 s9, s63
s_cmov_b32 s9, s65
s_mov_b32 s10, 0x180000
s_cmov_b32 s10, 0x1C0000
s_mov_b32 s25, 3072
s_cmov_b32 s25, 3584
s_mov_b32 s46, 0
s_cmov_b32 s46, 12
s_and_b32 s9, s9, 0xffff
s_mov_b32 s11, 0x00020000
s_sub_u32 s46, s24, s46
s_lshl_b32 s26, s46, 8           ; f0 bytes
v_and_b32 v2, 31, v1             ; t
v_lshrrev_b32 v3, 5, v1          ; hh
v_bfe_u32 v4, v2, 1, 3           ; swz
s_lshl_b32 s46, s21, 1
s_add_u32 s34, s46, s22          ; tileX(0)
s_lshl_b32 s46, s22, 1
s_and_b32 s47, s21, 1
s_add_u32 s36, s46, s47          ; ftW(0)
s_lshl_b32 s47, s34, 12
v_lshlrev_b32 v5, 7, v2
v_add_u32 v5, s47, v5
""")
    XA = lambda tt, ks: 16 + tt * 4 + ks
    for ks in range(4):
        A(f"""v_or_b32 v6, {2*ks}, v3
v_xor_b32 v6, v6, v4
v_lshl_add_u32 v{XA(0,ks)}, v6, 4, v5
v_xor_b32 v{XA(1,ks)}, 0x1000, v{XA(0,ks)}""")
    A("""
v_lshrrev_b32 v6, 4, v1          ; g
v_bfe_u32 v7, v1, 2, 2           ; r
v_and_b32 v8, 3, v1              ; c
v_lshrrev_b32 v9, 1, v6
v_lshl_add_u32 v9, v9, 3, v7
v_lshlrev_b32 v9, 8, v9
v_and_b32 v10, 1, v6
v_lshl_add_u32 v9, v10, 5, v9
v_lshl_add_u32 v9, v8, 3, v9
v_add_u32 v9, 0x8000, v9
v_xor_b32 v10, s36, v7
v_lshl_add_u32 v24, v10, 6, v9
v_xor_b32 v10, 1, v10
v_lshl_add_u32 v25, v10, 6, v9
v_lshrrev_b32 v6, 4, v1
v_and_b32 v7, 7, v1
v_xor_b32 v8, v7, v6
v_lshrrev_b32 v9, 3, v1
v_lshlrev_b32 v9, 10, v9
v_lshl_add_u32 v26, v8, 4, v9
v_or_b32 v8, 4, v6
v_xor_b32 v8, v7, v8
v_lshl_add_u32 v27, v8, 4, v9
v_and_b32 v7, 15, v1
v_lshlrev_b32 v8, 2, v6
v_xor_b32 v8, v7, v8
v_lshlrev_b32 v8, 4, v8
v_mul_lo_u32 v9, v6, s25
v_add_u32 v28, v8, v9
v_mov_b32 v29, 0xffff0000
s_lshl_b32 s27, s23, 8
s_lshl_b32 s46, s20, 5
s_add_u32 s27, s27, s46
s_lshl_b32 s27, s27, 10          ; X soffset
s_lshl_b32 s46, s20, 3
s_mul_i32 s28, s46, s25
s_add_u32 s28, s28, s26          ; W soffset
s_lshl_b32 s29, s20, 12
s_lshl_b32 s38, s20, 11
s_add_u32 s38, s38, 0x8000
s_lshl_b32 s30, s25, 2           ; 4*ldw
s_lshl_b32 s33, s25, 6           ; 64*ldw
s_mov_b32 s39, 0
s_mov_b32 s42, 0
""")
    for i in range(64, 160):
        A(f"v_mov_b32 v{i}, 0")
    for i in range(160, 164):
        A(f"v_mov_b32 v{i}, 0x3f803f80")
    FR = {0: dict(X=32, W=40), 1: dict(X=48, W=56)}
    ACC = lambda tt, ft: 64 + (tt * 2 + ft) * 16

    def dma():
        for i in range(4):
            A(f"""s_add_u32 s46, s29, s39
s_add_u32 m0, s46, {i*1024}
s_add_u32 s46, s27, {i*8192}
buffer_load_dwordx4 v{26 + (i&1)}, s[4:7], s46 offen lds""")
        A(f"""s_add_u32 m0, s38, s39
s_nop 0
buffer_load_dwordx4 v28, s[8:11], s28 offen lds
s_add_u32 s46, s38, s39
s_add_u32 m0, s46, 1024
s_add_u32 s46, s28, s30
buffer_load_dwordx4 v28, s[8:11], s46 offen lds
s_add_u32 s27, s27, 128
s_add_u32 s28, s28, s33
s_add_u32 s39, s39, {SLOT}
s_cmp_eq_u32 s39, {3*SLOT}
s_cmov_b32 s39, 0""")

    def reads(ks, st):
        f = FR[st]
        for tt in range(2):
            A(f"ds_read_b128 {vr(f['X']+4*tt,4)}, v{XA(tt,ks)}")
        for ft in range(2):
            for h2 in range(2):
                A(f"ds_read_b64_tr_b16 {vr(f['W']+4*ft+2*h2,2)}, v{24+ft} offset:{ks*4096 + h2*1024}")

    def compute(form, st, tag):
        f = FR[st]
        m = 0
        for tt in range(2):
            for ft in range(2):
                xx = vr(f['X']+4*tt,4); ww = vr(f['W']+4*ft,4)
                a, b = (ww, xx) if form == 'CT' else (xx, ww)
                A(f"v_mfma_f32_32x32x16_bf16 {vr(ACC(tt,ft),16)}, {a}, {b}, {vr(ACC(tt,ft),16)}")
                xr = f['X'] + m
                s = 128 + 4 * (m & 1)
                A(f"""v_and_b32 v140, v29, v{xr}
v_lshlrev_b32 v141, 16, v{xr}
v_add_f32 v{s}, v{s}, v140
v_add_f32 v{s+1}, v{s+1}, v141
v_fmac_f32 v{s+2}, v140, v140
v_fmac_f32 v{s+3}, v141, v141""")
                m += 1
        A(f"v_mfma_f32_32x32x16_bf16 v[144:159], {vr(f['W'],4)}, v[160:163], v[144:159]")

    def mainloop(form):
        stamp(0)
        dma(); dma()
        A("s_mov_b32 s40, 0")
        L = f"{name}_ml_{form}"
        A.label(L)
        A(f"""s_cmp_lt_u32 s40, 7
s_cbranch_scc1 {L}_w
s_waitcnt vmcnt(0)""")
        A.label(f"{L}_w")
        A(f"""s_waitcnt vmcnt(6)
s_barrier
s_cmp_ge_u32 s40, 6
s_cbranch_scc1 {L}_nd""")
        dma()
        A.label(f"{L}_nd")
        reads(0, 0)
        for ks in range(4):
            st = ks & 1
            if ks < 3:
                reads(ks + 1, st ^ 1)
                A("s_waitcnt lgkmcnt(6)")
            else:
                A("s_waitcnt lgkmcnt(0)")
            compute(form, st, f"{form}{ks}")
        A(f"""s_add_u32 s42, s42, {SLOT}
s_mov_b32 s43, {SLOT}
s_cmp_eq_u32 s42, {3*SLOT}
s_cmov_b32 s42, 0
s_cmov_b32 s43, {hex((-2*SLOT) & 0xffffffff)}""")
        for r in range(16, 26):
            A(f"v_add_u32 v{r}, s43, v{r}")
        A(f"""s_add_u32 s40, s40, 1
s_cmp_lt_u32 s40, 8
s_cbranch_scc1 {L}""")

    def round_bf16(dst, src, tmp):
        A(f"v_cvt_pk_bf16_f32 v{tmp}, v{src}, v{src}\nv_lshlrev_b32 v{dst}, 16, v{tmp}")
    def half_sum(reg, tmp):
        A(f"""v_mov_b32 v{tmp}, v{reg}
s_nop 1
v_permlane32_swap_b32 v{reg}, v{tmp}
v_add_f32 v{reg}, v{reg}, v{tmp}""")

    def stats_epilogue(tag, with_b1):
        A("""
s_nop 15
v_add_f32 v128, v128, v129
v_add_f32 v132, v132, v133
v_add_f32 v130, v130, v131
v_add_f32 v134, v134, v135
v_add_f32 v128, v128, v132
v_add_f32 v132, v130, v134
""")
        half_sum(128, 32); half_sum(132, 33)
        A("""
v_mul_f32 v128, 0x3b000000, v128
v_mul_f32 v132, 0x3b000000, v132
v_fma_f32 v132, -v128, v128, v132
v_max_f32 v132, 0, v132
""")
        round_bf16(128, 128, 32)
        round_bf16(132, 132, 33)
        A("v_add_f32 v132, 0x3727c5ac, v132")
        round_bf16(132, 132, 33)
        A("v_sqrt_f32 v132, v132\ns_nop 0")
        round_bf16(132, 132, 33)
        A(f"""
v_rcp_f32 v132, v132
s_nop 0
v_mul_f32 v133, v128, v132
s_lshl_b32 s46, s34, 8
v_lshl_add_u32 v32, v2, 3, s46
ds_write_b64 v32, v[132:133] offset:{STAT}
s_cmp_ge_u32 s21, 2
s_cbranch_scc1 {name}_nocs_{tag}
s_lshl_b32 s46, s36, 7
v_lshl_add_u32 v33, v2, 2, s46
v_lshl_add_u32 v34, v3, 4, s46
s_mov_b32 s46, 1
s_mov_b32 s47, 1
s_mov_b64 exec, s[46:47]
ds_write_b128 v34, v[144:147] offset:{CSO}
ds_write_b128 v34, v[148:151] offset:{CSO + 32}
ds_write_b128 v34, v[152:155] offset:{CSO + 64}
ds_write_b128 v34, v[156:159] offset:{CSO + 96}
s_mov_b64 exec, -1
""")
        if with_b1:
            A(f"""s_lshl_b32 s46, s36, 6
s_add_u32 s46, s46, s26
v_lshl_add_u32 v34, v2, 1, s46
buffer_load_ushort v35, v34, s[16:19], 0 offen
s_waitcnt vmcnt(0)
v_lshlrev_b32 v35, 16, v35
ds_write_b32 v33, v35 offset:{B1O}""")
        A.label(f"{name}_nocs_{tag}")
        A("s_waitcnt lgkmcnt(0)\ns_barrier")

    A(f"""
s_cmp_ge_u32 s24, 8
s_cselect_b32 s46, 1, 0
s_cmp_lt_u32 s24, 12
s_cselect_b32 s47, 1, 0
s_and_b32 s46, s46, s47
s_cmp_eq_u32 s46, 1
s_cbranch_scc1 {name}_vrole
""")
    mainloop('CT')
    stamp(1)
    if noepi: A("s_endpgm")
    A(f"s_cmp_ge_u32 s24, 12\ns_cbranch_scc1 {name}_hrole")
    stats_epilogue("qk", False)
    A(f"""
v_lshlrev_b32 v40, 4, v1
v_lshlrev_b32 v37, 4, v3
s_lshl_b32 s48, s23, 3
s_cmp_lt_u32 s24, 4
s_mov_b32 s49, 1.0
s_cmov_b32 s49, {hex(CQ)}
s_mov_b32 s50, {hex(KF)}
s_cmov_b32 s50, {hex(QF)}
s_mov_b32 s51, 4
s_cmov_b32 s51, 0
s_sub_u32 s51, s24, s51
s_lshl_b32 s51, s51, 3
s_mov_b32 s52, 0
""")
    A.label(f"{name}_qkl")
    A(f"""
s_lshr_b32 s53, s52, 1
s_xor_b32 s53, s53, s34            ; tileX(tt)
s_and_b32 s54, s52, 1
s_xor_b32 s54, s54, s36            ; ftW(ft)
s_lshl_b32 s46, s53, 8
v_lshl_add_u32 v36, v2, 3, s46
ds_read_b64 v[32:33], v36 offset:{STAT}
s_lshl_b32 s46, s54, 7
v_add_u32 v38, s46, v37
""")
    for j in range(4):
        A(f"ds_read_b128 {vr(144+4*j,4)}, v38 offset:{CSO + 32*j}")
    A("s_lshl_b32 s46, s52, 4\ns_set_gpr_idx_on s46, gpr_idx(SRC0)")
    for r in range(16):
        A(f"v_mov_b32 v{176+r}, v{64+r}")
    A("s_set_gpr_idx_off")
    A("""s_waitcnt lgkmcnt(0)
v_mul_f32 v32, s49, v32
v_mul_f32 v33, s49, v33""")
    for r in range(16):
        A(f"v_mul_f32 v{160+r}, v33, v{144+r}")
    for r in range(16):
        A(f"v_fma_f32 v{176+r}, v{176+r}, v32, -v{160+r}")
    for p in range(8):
        A(f"v_cvt_pk_bf16_f32 v{56+p}, v{176+2*p}, v{176+2*p+1}")
    A(f"""s_lshl_b32 s46, s54, 1
s_add_u32 s46, s46, s51
s_lshl_b32 s46, s46, 16
s_add_u32 s47, s48, s53
s_lshl_b32 s47, s47, 10
s_add_u32 s46, s46, s47
s_add_u32 s46, s46, s50
buffer_store_dwordx4 v[56:59], v40, s[12:15], s46 offen
s_add_u32 s46, s46, 0x10000
buffer_store_dwordx4 v[60:63], v40, s[12:15], s46 offen
s_add_u32 s52, s52, 1
s_cmp_lt_u32 s52, 4
s_cbranch_scc1 {name}_qkl
s_endpgm
""")
    A.label(f"{name}_hrole")
    stats_epilogue("h", True)
    A(f"""
v_lshlrev_b32 v40, 4, v1
v_lshlrev_b32 v37, 4, v3
s_lshl_b32 s48, s23, 3
v_mov_b32 v46, 0xc0135761
v_mov_b32 v47, 0xbdd2d3e8
s_mov_b32 s52, 0
""")
    A.label(f"{name}_hl")
    A(f"""
s_lshr_b32 s53, s52, 1
s_xor_b32 s53, s53, s34
s_and_b32 s54, s52, 1
s_xor_b32 s54, s54, s36
s_lshl_b32 s46, s53, 8
v_lshl_add_u32 v36, v2, 3, s46
ds_read_b64 v[32:33], v36 offset:{STAT}
s_lshl_b32 s46, s54, 7
v_add_u32 v38, s46, v37
""")
    for j in range(4):
        A(f"ds_read_b128 {vr(144+4*j,4)}, v38 offset:{CSO + 32*j}")
        A(f"ds_read_b128 {vr(160+4*j,4)}, v38 offset:{B1O + 32*j}")
    A("s_lshl_b32 s46, s52, 4\ns_set_gpr_idx_on s46, gpr_idx(SRC0)")
    for r in range(16):
        A(f"v_mov_b32 v{176+r}, v{64+r}")
    A("s_set_gpr_idx_off")
    A("s_waitcnt lgkmcnt(0)")
    for r0 in range(0, 16, 4):
        rs_ = range(r0, r0 + 4)
        for r in rs_:
            A(f"v_fma_f32 v{48+(r&3)}, -v33, v{144+r}, v{160+r}")
        for r in rs_:
            A(f"v_fma_f32 v{176+r}, v{176+r}, v32, v{48+(r&3)}")
        for op in ["v_mul_f32 v{t}, v{x}, v{x}", "v_fma_f32 v{t}, v{t}, v47, v46", "v_mul_f32 v{t}, v{t}, v{x}",
                   "v_exp_f32 v{t}, v{t}", "v_add_f32 v{t}, 1.0, v{t}", "v_rcp_f32 v{t}, v{t}", "v_mul_f32 v{x}, v{x}, v{t}"]:
            for r in rs_:
                A(op.format(t=52+(r&3), x=176+r))
    for p in range(8):
        A(f"v_cvt_pk_bf16_f32 v{56+p}, v{176+2*p}, v{176+2*p+1}")
    A(f"""s_add_u32 s47, s48, s53
s_mul_i32 s47, s47, 112
s_lshr_b32 s46, s26, 5
s_add_u32 s47, s47, s46
s_lshl_b32 s46, s54, 1
s_add_u32 s47, s47, s46
s_lshl_b32 s47, s47, 10
s_add_u32 s47, s47, {hex(HF)}
buffer_store_dwordx4 v[56:59], v40, s[12:15], s47 offen
buffer_store_dwordx4 v[60:63], v40, s[12:15], s47 offen offset:1024
s_add_u32 s52, s52, 1
s_cmp_lt_u32 s52, 4
s_cbranch_scc1 {name}_hl
""")
    stamp(3)
    A("s_endpgm")
    A.label(f"{name}_vrole")
    mainloop('C')
    stats_epilogue("v", False)
    A(f"""
v_lshlrev_b32 v37, 5, v3
v_lshrrev_b32 v40, 4, v2
v_lshlrev_b32 v40, 16, v40
v_lshl_add_u32 v40, v3, 8, v40
v_and_b32 v41, 15, v2
v_lshl_add_u32 v40, v41, 4, v40
s_lshl_b32 s48, s23, 3
s_sub_u32 s51, s24, 8
s_lshl_b32 s51, s51, 3
s_mov_b32 s52, 0
""")
    A.label(f"{name}_vl")
    A(f"""
s_lshr_b32 s53, s52, 1
s_xor_b32 s53, s53, s34
s_and_b32 s54, s52, 1
s_xor_b32 s54, s54, s36
s_lshl_b32 s46, s54, 7
v_lshl_add_u32 v36, v2, 2, s46
ds_read_b32 v32, v36 offset:{CSO}
s_lshl_b32 s46, s53, 8
v_add_u32 v38, s46, v37
""")
    for j in range(4):
        for h in range(2):
            A(f"ds_read_b128 {vr(144+8*j+4*h,4)}, v38 offset:{STAT + 64*j+16*h}")
    A("s_lshl_b32 s46, s52, 4\ns_set_gpr_idx_on s46, gpr_idx(SRC0)")
    for r in range(16):
        A(f"v_mov_b32 v{192+r}, v{64+r}")
    A("s_set_gpr_idx_off")
    A("s_waitcnt lgkmcnt(0)")
    for r in range(16):
        A(f"v_mul_f32 v{176+r}, v{144+2*r+1}, v32")
    for r in range(16):
        A(f"v_fma_f32 v{192+r}, v{192+r}, v{144+2*r}, -v{176+r}")
    for p in range(8):
        A(f"v_cvt_pk_bf16_f32 v{56+p}, v{192+2*p}, v{192+2*p+1}")
    A(f"""s_lshl_b32 s46, s54, 1
s_add_u32 s46, s46, s51
s_lshl_b32 s46, s46, 16
s_add_u32 s47, s48, s53
s_lshl_b32 s47, s47, 10
s_add_u32 s46, s46, s47
s_add_u32 s46, s46, {hex(VF)}
buffer_store_dwordx4 v[56:59], v40, s[12:15], s46 offen
buffer_store_dwordx4 v[60:63], v40, s[12:15], s46 offen offset:512
s_add_u32 s52, s52, 1
s_cmp_lt_u32 s52, 4
s_cbranch_scc1 {name}_vl
s_endpgm
""")
    A.label(f"{name}_transposer")
    A(f"""
s_sub_u32 s40, s2, 208
s_cmp_ge_u32 s40, 28
s_mov_b32 s8, s72
s_cmov_b32 s8, s70
s_mov_b32 s9, s73
s_cmov_b32 s9, s71
s_mov_b32 s10, 0x1C0000
s_cmov_b32 s10, 0x80000
s_mov_b32 s41, 0
s_cmov_b32 s41, 28
s_mov_b32 s42, {hex(W2F)}
s_cmov_b32 s42, {hex(WOF)}
s_mov_b32 s43, 112
s_cmov_b32 s43, 32
s_and_b32 s9, s9, 0xffff
s_mov_b32 s11, 0x00020000
s_sub_u32 s40, s40, s41
s_and_b32 s21, s20, 3              ; ks
s_lshr_b32 s22, s20, 2             ; fhalf
v_lshrrev_b32 v4, 5, v1
v_and_b32 v5, 31, v1
v_lshlrev_b32 v6, 2, v4
v_xor_b32 v6, v5, v6
v_lshlrev_b32 v6, 4, v6
v_lshl_add_u32 v6, v4, 10, v6
v_xor_b32 v7, 128, v6
s_lshl_b32 s44, s40, 6
s_lshl_b32 s45, s21, 4
s_add_u32 s44, s44, s45
s_lshl_b32 s44, s44, 10
s_lshl_b32 s45, s22, 9
s_add_u32 s44, s44, s45
s_lshl_b32 s45, s20, 13
""")
    for i in range(8):
        A(f"""s_add_u32 m0, s45, {i*1024}
s_add_u32 s46, s44, {i*2048}
buffer_load_dwordx4 v{6+(i&1)}, s[8:11], s46 offen lds""")
    A("""
v_lshrrev_b32 v8, 5, v1
v_bfe_u32 v9, v1, 4, 1
v_bfe_u32 v10, v1, 2, 2
v_and_b32 v11, 3, v1
v_lshl_add_u32 v12, v8, 2, v10
v_lshlrev_b32 v12, 9, v12
v_add_u32 v12, s45, v12
v_lshl_add_u32 v12, v9, 5, v12
v_lshl_add_u32 v12, v11, 3, v12
""")
    for q in range(4):
        A(f"v_xor_b32 v13, {q}, v10\nv_lshl_add_u32 v{16+q}, v13, 6, v12")
    A("""
v_lshlrev_b32 v14, 4, v1
s_lshl_b32 s47, s40, 2
s_add_u32 s47, s47, s21            ; kstep_g
s_lshl_b32 s49, s22, 3
s_waitcnt vmcnt(0)
""")
    for ft in range(8):
        b = 32 + 4*ft
        A(f"ds_read_b64_tr_b16 {vr(b,2)}, v{16+(ft&3)} offset:{(ft>>2)*256}")
        A(f"ds_read_b64_tr_b16 {vr(b+2,2)}, v{16+(ft&3)} offset:{(ft>>2)*256 + 4096}")
    for ft in range(8):
        b = 32 + 4*ft
        A(f"""s_add_u32 s48, s49, {ft}
s_mul_i32 s48, s48, s43
s_add_u32 s48, s48, s47
s_lshl_b32 s48, s48, 10
s_add_u32 s48, s48, s42
s_waitcnt lgkmcnt({2*(7-ft)})
buffer_store_dwordx4 {vr(b,4)}, v14, s[12:15], s48 offen""")
    A.label(f"{name}_exit")
    A("s_endpgm")
    return A.text()
```

```python
from asmdsl import *
from k1 import emit_srd

NAME = "k2_kernel"

def k2(name=NAME, ffn=True, groups=16):
    A = Asm()
    A.label(name)
    A(f"""
s_cmp_ge_u32 s2, 256
s_cbranch_scc1 {name}_exit
s_load_dwordx2 s[66:67], s[0:1], 80
s_load_dwordx2 s[68:69], s[0:1], 56
v_and_b32 v1, 63, v0
v_lshrrev_b32 v2, 6, v0
s_nop 0
v_readfirstlane_b32 s20, v2
v_lshlrev_b32 v3, 4, v1            ; lane*16
s_and_b32 s21, s2, 31              ; head
s_lshr_b32 s22, s2, 5              ; qb
s_waitcnt lgkmcnt(0)
""")
    emit_srd(A, 12, 66, 67, WS_BYTES)
    emit_srd(A, 16, 68, 69, 1024)
    A(f"""
s_cmp_ge_u32 s20, 8
s_cbranch_scc1 {name}_ffn
""")
    A(f"""
s_lshl_b32 s23, s21, 16            ; head*65536
s_lshl_b32 s24, s20, 10            ; w*1024
s_add_u32 s25, s23, s24
s_add_u32 s26, s25, {hex(KF)}
s_add_u32 s27, s25, {hex(VF)}
""")
    A(f"""
s_lshl_b32 s29, s22, 3
s_add_u32 s29, s29, s20            ; qtile
s_lshl_b32 s30, s29, 10
s_add_u32 s30, s30, s23
s_add_u32 s30, s30, {hex(QF)}
buffer_load_dwordx4 v[4:7], v3, s[12:15], s30 offen
""")
    for c in range(8):
        A(f"""s_add_u32 m0, s24, {c*8192}
s_add_u32 s28, s26, {c*8192}
buffer_load_dwordx4 v3, s[12:15], s28 offen lds
s_add_u32 m0, s24, {65536 + c*8192}
s_add_u32 s28, s27, {c*8192}
buffer_load_dwordx4 v3, s[12:15], s28 offen lds""")
    VB = [[100, 104], [108, 112]]
    KB = [92, 96]
    SB = [32, 48]
    O = 64; P = 80; E = 84
    A("""
v_and_b32 v8, 31, v1               ; m
v_lshrrev_b32 v9, 5, v1            ; hh
v_cmp_eq_u32 vcc, 16, v8
s_mov_b64 s[30:31], vcc
v_cmp_eq_u32 vcc, 20, v8
s_or_b64 vcc, vcc, s[30:31]
v_mov_b32 v10, 0x3f803f80
s_nop 1
v_cndmask_b32 v10, 0, v10, vcc
""")
    for r in range(100, 116):
        A(f"v_mov_b32 v{r}, v10")
    for r in range(O, O + 16):
        A(f"v_mov_b32 v{r}, 0")
    A("""
v_mov_b32 v116, v3                 ; K addr
v_and_b32 v11, 15, v8
v_lshlrev_b32 v117, 4, v11
v_lshl_add_u32 v117, v9, 8, v117
v_add_u32 v117, 0x10000, v117      ; V addr
s_mov_b32 s34, 0x0000ffff
s_mov_b32 s35, 0x0000ffff
s_setprio 2
s_waitcnt vmcnt(12)
s_barrier
""")
    A(f"""
ds_read_b128 {vr(KB[0],4)}, v116
ds_read_b128 {vr(KB[1],4)}, v116 offset:1024
s_mov_b64 exec, s[34:35]
ds_read_b128 {vr(VB[0][0],4)}, v117
ds_read_b128 {vr(VB[0][1],4)}, v117 offset:512
s_mov_b64 exec, -1
s_waitcnt lgkmcnt(3)
v_mfma_f32_32x32x16_bf16 {vr(SB[1],16)}, {vr(KB[0],4)}, v[4:7], 0
s_nop 15
s_nop 3
v_max3_f32 v8, v{SB[1]}, v{SB[1]+1}, v{SB[1]+2}
""")
    for r in range(3, 15, 2):
        A(f"v_max3_f32 v8, v8, v{SB[1]+r}, v{SB[1]+r+1}")
    A(f"""v_max_f32 v8, v8, v{SB[1]+15}
v_mov_b32 v9, v8
s_nop 1
v_permlane32_swap_b32 v8, v9
v_max_f32 v8, v8, v9
v_sub_f32 v8, 0, v8
""")
    for r in range(16, 32):
        A(f"v_mov_b32 v{r}, v8")
    A(f"""s_nop 1
v_mfma_f32_32x32x16_bf16 {vr(SB[0],16)}, {vr(KB[0],4)}, v[4:7], v[16:31]
s_mov_b32 s36, {groups}
""")
    A.label(f"{name}_aloop")
    for u in range(4):
        cur = u & 1; nxt = cur ^ 1
        s = SB[cur]
        A(f"""s_waitcnt lgkmcnt(2)
v_mfma_f32_32x32x16_bf16 {vr(SB[nxt],16)}, {vr(KB[nxt],4)}, v[4:7], v[16:31]
ds_read_b128 {vr(KB[cur],4)}, v116 offset:{(u+2)*1024}
s_mov_b64 exec, s[34:35]
ds_read_b128 {vr(VB[nxt][0],4)}, v117 offset:{(u+1)*1024}
ds_read_b128 {vr(VB[nxt][1],4)}, v117 offset:{(u+1)*1024+512}
s_mov_b64 exec, -1
v_exp_f32 v{E}, v{s}
v_exp_f32 v{E+1}, v{s+1}
v_exp_f32 v{E+2}, v{s+2}
v_exp_f32 v{E+3}, v{s+3}
v_exp_f32 v{E+4}, v{s+4}
v_cvt_pk_bf16_f32 v{P}, v{E}, v{E+1}
v_exp_f32 v{E+5}, v{s+5}
v_cvt_pk_bf16_f32 v{P+1}, v{E+2}, v{E+3}
v_exp_f32 v{E+6}, v{s+6}
v_exp_f32 v{E+7}, v{s+7}
v_cvt_pk_bf16_f32 v{P+2}, v{E+4}, v{E+5}
v_cvt_pk_bf16_f32 v{P+3}, v{E+6}, v{E+7}
v_exp_f32 v{E}, v{s+8}
v_exp_f32 v{E+1}, v{s+9}
s_waitcnt lgkmcnt(3)
v_mfma_f32_32x32x16_bf16 {vr(O,16)}, {vr(VB[cur][0],4)}, {vr(P,4)}, {vr(O,16)}
v_exp_f32 v{E+2}, v{s+10}
v_exp_f32 v{E+3}, v{s+11}
v_exp_f32 v{E+4}, v{s+12}
v_cvt_pk_bf16_f32 v{P+4}, v{E}, v{E+1}
v_exp_f32 v{E+5}, v{s+13}
v_cvt_pk_bf16_f32 v{P+5}, v{E+2}, v{E+3}
v_exp_f32 v{E+6}, v{s+14}
v_exp_f32 v{E+7}, v{s+15}
v_cvt_pk_bf16_f32 v{P+6}, v{E+4}, v{E+5}
v_cvt_pk_bf16_f32 v{P+7}, v{E+6}, v{E+7}
s_nop 1
v_mfma_f32_32x32x16_bf16 {vr(O,16)}, {vr(VB[cur][1],4)}, {vr(P+4,4)}, {vr(O,16)}""")
    A(f"""v_add_u32 v116, 0x1000, v116
v_add_u32 v117, 0x1000, v117
s_sub_u32 s36, s36, 1
s_cmp_lg_u32 s36, {groups-2}
s_cbranch_scc1 {name}_anb
s_waitcnt vmcnt(0)
s_barrier
{name}_anb:
s_cmp_lg_u32 s36, 0
s_cbranch_scc1 {name}_aloop
s_nop 15
s_nop 3
; normalize: l = O[8]
v_rcp_f32 v8, v{O+8}
s_nop 0
""")
    for r in range(8):
        A(f"v_mul_f32 v{O+r}, v{O+r}, v8")
    for p in range(4):
        A(f"v_cvt_pk_bf16_f32 v{P+p}, v{O+2*p}, v{O+2*p+1}")
    A(f"""
s_lshl_b32 s30, s29, 5
s_add_u32 s30, s30, s21
s_lshl_b32 s30, s30, 10
s_add_u32 s30, s30, {hex(OF)}
buffer_store_dwordx4 {vr(P,4)}, v3, s[12:15], s30 offen
s_endpgm
""")
    A.label(f"{name}_ffn")
    A(f"""
s_sub_u32 s23, s20, 8
s_lshr_b32 s24, s23, 1             ; tt
s_and_b32 s25, s23, 1              ; ft
s_and_b32 s26, s2, 7
s_bfe_u32 s27, s2, 0x20003         ; (id>>3)&3
s_lshl_b32 s27, s27, 3
s_add_u32 s26, s26, s27            ; tb 0..31
s_lshr_b32 s27, s2, 5              ; fb 0..7
s_lshl_b32 s26, s26, 1
s_add_u32 s26, s26, s24            ; ttile
s_lshl_b32 s27, s27, 1
s_add_u32 s27, s27, s25            ; ftile
s_mul_i32 s28, s26, {112*1024}
s_add_u32 s28, s28, {hex(HF)}
s_mul_i32 s29, s27, {112*1024}
s_add_u32 s29, s29, {hex(W2F)}
""")
    ACC = 64; XR = 80; WR = 112; D = 8
    for r in range(16):
        A(f"v_mov_b32 v{ACC+r}, 0")
    for i in range(D):
        A(f"""buffer_load_dwordx4 {vr(XR+4*i,4)}, v3, s[12:15], s28 offen offset:{i*1024 if i<4 else 0}""" if i < 4 else
          f"""s_add_u32 s30, s28, {i*1024}
buffer_load_dwordx4 {vr(XR+4*i,4)}, v3, s[12:15], s30 offen""")
        A(f"""s_add_u32 s30, s29, {i*1024}
buffer_load_dwordx4 {vr(WR+4*i,4)}, v3, s[12:15], s30 offen""")
    A("s_barrier\ns_barrier")
    if not ffn: A("s_endpgm")
    A(f"""s_add_u32 s28, s28, {D*1024}
s_add_u32 s29, s29, {D*1024}
s_mov_b32 s36, 13""")
    A.label(f"{name}_floop")
    for i in range(D):
        A(f"""s_waitcnt vmcnt({2*D-2})
v_mfma_f32_32x32x16_bf16 {vr(ACC,16)}, {vr(WR+4*i,4)}, {vr(XR+4*i,4)}, {vr(ACC,16)}
s_add_u32 s30, s28, {i*1024}
buffer_load_dwordx4 {vr(XR+4*i,4)}, v3, s[12:15], s30 offen
s_add_u32 s30, s29, {i*1024}
buffer_load_dwordx4 {vr(WR+4*i,4)}, v3, s[12:15], s30 offen""")
    A(f"""s_add_u32 s28, s28, {D*1024}
s_add_u32 s29, s29, {D*1024}
s_sub_u32 s36, s36, 1
s_cmp_lg_u32 s36, 0
s_cbranch_scc1 {name}_floop
""")
    for i in range(D):
        A(f"""s_waitcnt vmcnt({2*(D-1-i)})
v_mfma_f32_32x32x16_bf16 {vr(ACC,16)}, {vr(WR+4*i,4)}, {vr(XR+4*i,4)}, {vr(ACC,16)}""")
    A(f"""
v_lshrrev_b32 v9, 5, v1            ; hh
v_and_b32 v8, 31, v1               ; t
v_lshlrev_b32 v10, 3, v9
s_lshl_b32 s30, s27, 6
v_add_u32 v10, s30, v10
""")
    for j in range(4):
        A(f"buffer_load_dwordx2 {vr(96+2*j,2)}, v10, s[16:19], 0 offen offset:{16*j}")
    A("s_lshl_b32 s31, s26, 5\nv_add_u32 v11, s31, v8\nv_lshlrev_b32 v11, 10, v11\nv_lshl_add_u32 v11, v9, 4, v11\ns_lshl_b32 s30, s27, 6\nv_add_u32 v11, s30, v11")
    A("s_nop 7\ns_nop 7")
    for p in range(8):
        A(f"v_cvt_pk_bf16_f32 v{80+p}, v{ACC+2*p}, v{ACC+2*p+1}")
    A("s_waitcnt vmcnt(0)")
    for p in range(8):
        A(f"""v_lshlrev_b32 v{ACC+2*p}, 16, v{80+p}
v_and_b32 v{ACC+2*p+1}, 0xffff0000, v{80+p}
v_lshlrev_b32 v88, 16, v{96+p}
v_and_b32 v89, 0xffff0000, v{96+p}
v_add_f32 v{ACC+2*p}, v{ACC+2*p}, v88
v_add_f32 v{ACC+2*p+1}, v{ACC+2*p+1}, v89""")
    for p in range(8):
        A(f"v_cvt_pk_bf16_f32 v{80+p}, v{ACC+2*p}, v{ACC+2*p+1}")
    A(f"""s_nop 1
v_permlane32_swap_b32 v80, v82
v_permlane32_swap_b32 v81, v83
v_permlane32_swap_b32 v84, v86
v_permlane32_swap_b32 v85, v87
s_nop 1
s_mov_b32 s30, {hex(Y2)}
buffer_store_dwordx4 v[80:83], v11, s[12:15], s30 offen
buffer_store_dwordx4 v[84:87], v11, s[12:15], s30 offen offset:32
""")
    A.label(f"{name}_exit")
    A("s_endpgm")
    return A.text()

def entry(**kw):
    return (NAME, k2(**kw), 256, 768, 135168, 144)
```

```python
import sys
sys.path.insert(0, "dev")
from asmdsl import *
import importlib

HEADER = """; Kernarg layout for this problem (88 bytes, ptrs only, base s[0:1]):
"""

def desc(name, vgpr, sgpr=102):
    acc = (vgpr + 3) // 4 * 4
    return f""".amdhsa_kernel {name}
  .amdhsa_next_free_vgpr {vgpr}
  .amdhsa_next_free_sgpr {sgpr}
  .amdhsa_accum_offset {acc}
  .amdhsa_group_segment_fixed_size 0
  .amdhsa_kernarg_size 88
  .amdhsa_user_sgpr_count 2
  .amdhsa_user_sgpr_kernarg_segment_ptr 1
  .amdhsa_system_sgpr_workgroup_id_x 1
.end_amdhsa_kernel
"""

def build(kernels):
    out = HEADER
    for (label, text, grid, block, lds, vgpr) in kernels:
        out += f"; @launch kernel={label} grid=({grid},1,1) block=({block},1,1) lds={lds}\n"
    out += '.amdgcn_target "amdgcn-amd-amdhsa--gfx950"\n.text\n'
    for (label, text, grid, block, lds, vgpr) in kernels:
        out += f".globl {label}\n.p2align 8\n.type {label},@function\n" + text
    out += '.section .rodata,"a"\n.p2align 6\n'
    for (label, text, grid, block, lds, vgpr) in kernels:
        out += desc(label, vgpr)
    return out

if __name__ == "__main__":
    import k1, os, json
    ks = [("k1_kernel", k1.k1("k1_kernel", **json.loads(os.environ.get("K1OPT", "{}"))), 244, 512, 147456, 208)]
    try:
        import k2, os, json
        ks.append(k2.entry(**json.loads(os.environ.get("K2OPT", "{}"))))
        import k3
        ks.append(k3.entry())
    except ImportError as e:
        print("note:", e, file=sys.stderr)
    dst = sys.argv[1] if len(sys.argv) > 1 else "parallel_sum__mha_block__dense_activation_gelu__prompt.s"
    open(dst, "w").write(build(ks))
    print("wrote", dst)
```

```python
from asmdsl import *
from k1 import emit_srd

NAME = "k2_kernel"

def k2(name=NAME, ffn=True, groups=16):
    A = Asm()
    A.label(name)
    A(f"""
s_cmp_ge_u32 s2, 256
s_cbranch_scc1 {name}_exit
s_load_dwordx2 s[66:67], s[0:1], 80
s_load_dwordx2 s[68:69], s[0:1], 56
v_and_b32 v1, 63, v0
v_lshrrev_b32 v2, 6, v0
s_nop 0
v_readfirstlane_b32 s20, v2
v_lshlrev_b32 v3, 4, v1            ; lane*16
s_and_b32 s21, s2, 31              ; head
s_lshr_b32 s22, s2, 5              ; qb
s_waitcnt lgkmcnt(0)
""")
    emit_srd(A, 12, 66, 67, WS_BYTES)
    emit_srd(A, 16, 68, 69, 1024)
    A(f"""
s_cmp_ge_u32 s20, 8
s_cbranch_scc1 {name}_ffn
""")
    A(f"""
s_lshl_b32 s23, s21, 16            ; head*65536
s_lshl_b32 s24, s20, 10            ; w*1024
s_add_u32 s25, s23, s24
s_add_u32 s26, s25, {hex(KF)}
s_add_u32 s27, s25, {hex(VF)}
""")
    A(f"""
s_lshl_b32 s29, s22, 3
s_add_u32 s29, s29, s20            ; qtile
s_lshl_b32 s30, s29, 10
s_add_u32 s30, s30, s23
s_add_u32 s30, s30, {hex(QF)}
buffer_load_dwordx4 v[4:7], v3, s[12:15], s30 offen
""")
    for c in range(8):
        A(f"""s_add_u32 m0, s24, {c*8192}
s_add_u32 s28, s26, {c*8192}
buffer_load_dwordx4 v3, s[12:15], s28 offen lds
s_add_u32 m0, s24, {65536 + c*8192}
s_add_u32 s28, s27, {c*8192}
buffer_load_dwordx4 v3, s[12:15], s28 offen lds""")
    VB = [[100, 104], [108, 112]]
    KB = [92, 96]
    SB = [32, 48]
    O = 64; P = 80; E = 84
    A("""
v_and_b32 v8, 31, v1               ; m
v_lshrrev_b32 v9, 5, v1            ; hh
v_cmp_eq_u32 vcc, 16, v8
s_mov_b64 s[30:31], vcc
v_cmp_eq_u32 vcc, 20, v8
s_or_b64 vcc, vcc, s[30:31]
v_mov_b32 v10, 0x3f803f80
s_nop 1
v_cndmask_b32 v10, 0, v10, vcc
""")
    for r in range(100, 116):
        A(f"v_mov_b32 v{r}, v10")
    for r in range(O, O + 16):
        A(f"v_mov_b32 v{r}, 0")
    A("""
v_mov_b32 v119, 0x5d800000        ; 2^60
v_mov_b32 v116, v3                 ; K addr
v_and_b32 v11, 15, v8
v_lshlrev_b32 v117, 4, v11
v_lshl_add_u32 v117, v9, 8, v117
v_add_u32 v117, 0x10000, v117      ; V addr
s_mov_b32 s34, 0x0000ffff
s_mov_b32 s35, 0x0000ffff
s_setprio 2
s_waitcnt vmcnt(12)
s_barrier
""")
    A(f"""
ds_read_b128 {vr(KB[0],4)}, v116
ds_read_b128 {vr(KB[1],4)}, v116 offset:1024
s_mov_b64 exec, s[34:35]
ds_read_b128 {vr(VB[0][0],4)}, v117
ds_read_b128 {vr(VB[0][1],4)}, v117 offset:512
s_mov_b64 exec, -1
s_waitcnt lgkmcnt(3)
v_mfma_f32_32x32x16_bf16 {vr(SB[1],16)}, {vr(KB[0],4)}, v[4:7], 0
s_nop 15
s_nop 3
v_max3_f32 v8, v{SB[1]}, v{SB[1]+1}, v{SB[1]+2}
""")
    for r in range(3, 15, 2):
        A(f"v_max3_f32 v8, v8, v{SB[1]+r}, v{SB[1]+r+1}")
    A(f"""v_max_f32 v8, v8, v{SB[1]+15}
v_mov_b32 v9, v8
s_nop 1
v_permlane32_swap_b32 v8, v9
v_max_f32 v8, v8, v9
v_sub_f32 v8, 0, v8
""")
    for r in range(16, 32):
        A(f"v_mov_b32 v{r}, v8")
    A(f"""s_nop 1
v_mfma_f32_32x32x16_bf16 {vr(SB[0],16)}, {vr(KB[0],4)}, v[4:7], v[16:31]
s_mov_b32 s36, {groups}
""")
    A.label(f"{name}_aloop")
    for u in range(4):
        cur = u & 1; nxt = cur ^ 1
        s = SB[cur]
        A(f"""s_waitcnt lgkmcnt(2)
v_mfma_f32_32x32x16_bf16 {vr(SB[nxt],16)}, {vr(KB[nxt],4)}, v[4:7], v[16:31]
ds_read_b128 {vr(KB[cur],4)}, v116 offset:{(u+2)*1024}
s_mov_b64 exec, s[34:35]
ds_read_b128 {vr(VB[nxt][0],4)}, v117 offset:{(u+1)*1024}
ds_read_b128 {vr(VB[nxt][1],4)}, v117 offset:{(u+1)*1024+512}
s_mov_b64 exec, -1
v_exp_f32 v{E}, v{s}
v_exp_f32 v{E+1}, v{s+1}
v_exp_f32 v{E+2}, v{s+2}
v_exp_f32 v{E+3}, v{s+3}
v_exp_f32 v{E+4}, v{s+4}
v_cvt_pk_bf16_f32 v{P}, v{E}, v{E+1}
v_exp_f32 v{E+5}, v{s+5}
v_cvt_pk_bf16_f32 v{P+1}, v{E+2}, v{E+3}
v_exp_f32 v{E+6}, v{s+6}
v_exp_f32 v{E+7}, v{s+7}
v_cvt_pk_bf16_f32 v{P+2}, v{E+4}, v{E+5}
v_cvt_pk_bf16_f32 v{P+3}, v{E+6}, v{E+7}
v_exp_f32 v{E}, v{s+8}
v_exp_f32 v{E+1}, v{s+9}
s_waitcnt lgkmcnt(3)
v_mfma_f32_32x32x16_bf16 {vr(O,16)}, {vr(VB[cur][0],4)}, {vr(P,4)}, {vr(O,16)}
v_exp_f32 v{E+2}, v{s+10}
v_exp_f32 v{E+3}, v{s+11}
v_exp_f32 v{E+4}, v{s+12}
v_cvt_pk_bf16_f32 v{P+4}, v{E}, v{E+1}
v_exp_f32 v{E+5}, v{s+13}
v_cvt_pk_bf16_f32 v{P+5}, v{E+2}, v{E+3}
v_exp_f32 v{E+6}, v{s+14}
v_exp_f32 v{E+7}, v{s+15}
v_cvt_pk_bf16_f32 v{P+6}, v{E+4}, v{E+5}
v_cvt_pk_bf16_f32 v{P+7}, v{E+6}, v{E+7}
s_nop 1
v_mfma_f32_32x32x16_bf16 {vr(O,16)}, {vr(VB[cur][1],4)}, {vr(P+4,4)}, {vr(O,16)}""")
    A(f"""v_add_u32 v116, 0x1000, v116
v_add_u32 v117, 0x1000, v117
s_sub_u32 s36, s36, 1
s_cmp_lg_u32 s36, {groups-2}
s_cbranch_scc1 {name}_anb
s_waitcnt vmcnt(0)
s_barrier
{name}_anb:
s_cmp_lg_u32 s36, 0
s_cbranch_scc1 {name}_aloop
s_nop 15
s_nop 3
v_cmp_nlt_f32 vcc, v{O+8}, v119
s_cbranch_vccnz {name}_safe
{name}_norm:
v_rcp_f32 v8, v{O+8}
s_nop 0
""")
    for r in range(8):
        A(f"v_mul_f32 v{O+r}, v{O+r}, v8")
    for p in range(4):
        A(f"v_cvt_pk_bf16_f32 v{P+p}, v{O+2*p}, v{O+2*p+1}")
    A(f"""
s_lshl_b32 s30, s29, 5
s_add_u32 s30, s30, s21
s_lshl_b32 s30, s30, 10
s_add_u32 s30, s30, {hex(OF)}
buffer_store_dwordx4 {vr(P,4)}, v3, s[12:15], s30 offen
s_endpgm
""")
    A.label(f"{name}_safe")
    A(f"""
v_mov_b32 v116, v3
v_and_b32 v8, 31, v1
v_lshrrev_b32 v9, 5, v1
v_and_b32 v11, 15, v8
v_lshlrev_b32 v117, 4, v11
v_lshl_add_u32 v117, v9, 8, v117
v_add_u32 v117, 0x10000, v117
v_mov_b32 v10, 0xff7fffff
""")
    for r in range(O, O + 16):
        A(f"v_mov_b32 v{r}, 0")
    A("s_mov_b32 s36, 64")
    A.label(f"{name}_sloop")
    s0 = SB[0]
    A(f"""
ds_read_b128 {vr(KB[0],4)}, v116
s_mov_b64 exec, s[34:35]
ds_read_b128 {vr(VB[0][0],4)}, v117
ds_read_b128 {vr(VB[0][1],4)}, v117 offset:512
s_mov_b64 exec, -1
s_waitcnt lgkmcnt(0)
v_mfma_f32_32x32x16_bf16 {vr(s0,16)}, {vr(KB[0],4)}, v[4:7], 0
s_nop 15
s_nop 3
v_max3_f32 v8, v{s0}, v{s0+1}, v{s0+2}
""")
    for r in range(3, 15, 2):
        A(f"v_max3_f32 v8, v8, v{s0+r}, v{s0+r+1}")
    A(f"""v_max_f32 v8, v8, v{s0+15}
v_mov_b32 v9, v8
s_nop 1
v_permlane32_swap_b32 v8, v9
v_max3_f32 v8, v8, v9, v10         ; m_new
v_sub_f32 v9, v10, v8
v_exp_f32 v9, v9                   ; alpha
v_mov_b32 v10, v8
""")
    for r in range(16):
        A(f"v_mul_f32 v{O+r}, v{O+r}, v9")
    for r in range(16):
        A(f"v_sub_f32 v{s0+r}, v{s0+r}, v8\nv_exp_f32 v{s0+r}, v{s0+r}")
    A("s_nop 0")
    for p in range(8):
        A(f"v_cvt_pk_bf16_f32 v{P+p}, v{s0+2*p}, v{s0+2*p+1}")
    A(f"""s_nop 1
v_mfma_f32_32x32x16_bf16 {vr(O,16)}, {vr(VB[0][0],4)}, {vr(P,4)}, {vr(O,16)}
v_mfma_f32_32x32x16_bf16 {vr(O,16)}, {vr(VB[0][1],4)}, {vr(P+4,4)}, {vr(O,16)}
v_add_u32 v116, 0x400, v116
v_add_u32 v117, 0x400, v117
s_sub_u32 s36, s36, 1
s_cmp_lg_u32 s36, 0
s_cbranch_scc1 {name}_sloop
s_nop 15
s_nop 3
s_branch {name}_norm
""")
    A.label(f"{name}_ffn")
    A(f"""
s_sub_u32 s23, s20, 8
s_lshr_b32 s24, s23, 1             ; tt
s_and_b32 s25, s23, 1              ; ft
s_and_b32 s26, s2, 7
s_bfe_u32 s27, s2, 0x20003         ; (id>>3)&3
s_lshl_b32 s27, s27, 3
s_add_u32 s26, s26, s27            ; tb 0..31
s_lshr_b32 s27, s2, 5              ; fb 0..7
s_lshl_b32 s26, s26, 1
s_add_u32 s26, s26, s24            ; ttile
s_lshl_b32 s27, s27, 1
s_add_u32 s27, s27, s25            ; ftile
s_mul_i32 s28, s26, {112*1024}
s_add_u32 s28, s28, {hex(HF)}
s_mul_i32 s29, s27, {112*1024}
s_add_u32 s29, s29, {hex(W2F)}
""")
    ACC = 64; XR = 80; WR = 112; D = 8
    for r in range(16):
        A(f"v_mov_b32 v{ACC+r}, 0")
    for i in range(D):
        A(f"""buffer_load_dwordx4 {vr(XR+4*i,4)}, v3, s[12:15], s28 offen offset:{i*1024 if i<4 else 0}""" if i < 4 else
          f"""s_add_u32 s30, s28, {i*1024}
buffer_load_dwordx4 {vr(XR+4*i,4)}, v3, s[12:15], s30 offen""")
        A(f"""s_add_u32 s30, s29, {i*1024}
buffer_load_dwordx4 {vr(WR+4*i,4)}, v3, s[12:15], s30 offen""")
    A("s_barrier\ns_barrier")
    if not ffn: A("s_endpgm")
    A(f"""s_add_u32 s28, s28, {D*1024}
s_add_u32 s29, s29, {D*1024}
s_mov_b32 s36, 13""")
    A.label(f"{name}_floop")
    for i in range(D):
        A(f"""s_waitcnt vmcnt({2*D-2})
v_mfma_f32_32x32x16_bf16 {vr(ACC,16)}, {vr(WR+4*i,4)}, {vr(XR+4*i,4)}, {vr(ACC,16)}
s_add_u32 s30, s28, {i*1024}
buffer_load_dwordx4 {vr(XR+4*i,4)}, v3, s[12:15], s30 offen
s_add_u32 s30, s29, {i*1024}
buffer_load_dwordx4 {vr(WR+4*i,4)}, v3, s[12:15], s30 offen""")
    A(f"""s_add_u32 s28, s28, {D*1024}
s_add_u32 s29, s29, {D*1024}
s_sub_u32 s36, s36, 1
s_cmp_lg_u32 s36, 0
s_cbranch_scc1 {name}_floop
""")
    for i in range(D):
        A(f"""s_waitcnt vmcnt({2*(D-1-i)})
v_mfma_f32_32x32x16_bf16 {vr(ACC,16)}, {vr(WR+4*i,4)}, {vr(XR+4*i,4)}, {vr(ACC,16)}""")
    A(f"""
v_lshrrev_b32 v9, 5, v1            ; hh
v_and_b32 v8, 31, v1               ; t
v_lshlrev_b32 v10, 3, v9
s_lshl_b32 s30, s27, 6
v_add_u32 v10, s30, v10
""")
    for j in range(4):
        A(f"buffer_load_dwordx2 {vr(96+2*j,2)}, v10, s[16:19], 0 offen offset:{16*j}")
    A("s_lshl_b32 s31, s26, 5\nv_add_u32 v11, s31, v8\nv_lshlrev_b32 v11, 10, v11\nv_lshl_add_u32 v11, v9, 4, v11\ns_lshl_b32 s30, s27, 6\nv_add_u32 v11, s30, v11")
    A("s_nop 7\ns_nop 7")
    for p in range(8):
        A(f"v_cvt_pk_bf16_f32 v{80+p}, v{ACC+2*p}, v{ACC+2*p+1}")
    A("s_waitcnt vmcnt(0)")
    for p in range(8):
        A(f"""v_lshlrev_b32 v{ACC+2*p}, 16, v{80+p}
v_and_b32 v{ACC+2*p+1}, 0xffff0000, v{80+p}
v_lshlrev_b32 v88, 16, v{96+p}
v_and_b32 v89, 0xffff0000, v{96+p}
v_add_f32 v{ACC+2*p}, v{ACC+2*p}, v88
v_add_f32 v{ACC+2*p+1}, v{ACC+2*p+1}, v89""")
    for p in range(8):
        A(f"v_cvt_pk_bf16_f32 v{80+p}, v{ACC+2*p}, v{ACC+2*p+1}")
    A(f"""s_nop 1
v_permlane32_swap_b32 v80, v82
v_permlane32_swap_b32 v81, v83
v_permlane32_swap_b32 v84, v86
v_permlane32_swap_b32 v85, v87
s_nop 1
s_mov_b32 s30, {hex(Y2)}
buffer_store_dwordx4 v[80:83], v11, s[12:15], s30 offen
buffer_store_dwordx4 v[84:87], v11, s[12:15], s30 offen offset:32
""")
    A.label(f"{name}_exit")
    A("s_endpgm")
    return A.text()

def entry(**kw):
    return (NAME, k2(**kw), 256, 768, 135168, 144)
```

```python
from asmdsl import *
from k1 import emit_srd
NAME = "k3_kernel"
def k3(name=NAME):
    A = Asm()
    A.label(name)
    A(f"""
s_cmp_ge_u32 s2, 256
s_cbranch_scc1 {name}_exit
s_load_dwordx2 s[66:67], s[0:1], 80
s_load_dwordx2 s[68:69], s[0:1], 0
s_load_dwordx2 s[70:71], s[0:1], 64
v_and_b32 v1, 63, v0
v_lshrrev_b32 v2, 6, v0
s_nop 0
v_readfirstlane_b32 s20, v2
v_lshlrev_b32 v3, 4, v1
s_waitcnt lgkmcnt(0)
""")
    emit_srd(A, 12, 66, 67, WS_BYTES)
    emit_srd(A, 16, 68, 69, 0x200000)
    emit_srd(A, 4, 70, 71, 0x200000)
    A(f"""
s_and_b32 s23, s20, 3
s_lshr_b32 s22, s20, 2
s_lshr_b32 s24, s23, 1
s_and_b32 s25, s23, 1
s_and_b32 s26, s2, 7
s_bfe_u32 s27, s2, 0x20003
s_lshl_b32 s27, s27, 3
s_add_u32 s26, s26, s27
s_lshr_b32 s27, s2, 5
s_lshl_b32 s26, s26, 1
s_add_u32 s26, s26, s24            ; ttile
s_lshl_b32 s27, s27, 1
s_add_u32 s27, s27, s25            ; ftile
s_lshl_b32 s28, s26, 15
s_add_u32 s28, s28, {hex(OF)}
s_lshl_b32 s29, s27, 15
s_add_u32 s29, s29, {hex(WOF)}
s_lshl_b32 s31, s22, 14
s_add_u32 s28, s28, s31
s_add_u32 s29, s29, s31
""")
    ACC = 16; XR = 32; WR = 96
    for r in range(16):
        A(f"v_mov_b32 v{ACC+r}, 0")
    for i in range(16):
        A(f"""s_add_u32 s30, s28, {i*1024}
buffer_load_dwordx4 {vr(XR+4*i,4)}, v3, s[12:15], s30 offen
s_add_u32 s30, s29, {i*1024}
buffer_load_dwordx4 {vr(WR+4*i,4)}, v3, s[12:15], s30 offen""")
    A("""v_lshrrev_b32 v9, 5, v1
v_and_b32 v8, 31, v1
s_lshl_b32 s31, s26, 5
v_add_u32 v11, s31, v8
v_lshlrev_b32 v11, 10, v11
v_lshl_add_u32 v11, v9, 4, v11
s_lshl_b32 s30, s27, 6
v_add_u32 v11, s30, v11
buffer_load_dwordx4 v[160:163], v11, s[16:19], 0 offen
buffer_load_dwordx4 v[164:167], v11, s[16:19], 0 offen offset:32""")
    A(f"""s_mov_b32 s30, {hex(Y2)}
buffer_load_dwordx4 v[168:171], v11, s[12:15], s30 offen
buffer_load_dwordx4 v[172:175], v11, s[12:15], s30 offen offset:32""")
    for i in range(16):
        A(f"""s_waitcnt vmcnt({30 - 2*i + 4})
v_mfma_f32_32x32x16_bf16 {vr(ACC,16)}, {vr(WR+4*i,4)}, {vr(XR+4*i,4)}, {vr(ACC,16)}""")
    A(f"""s_nop 15
s_nop 3
s_lshl_b32 s30, s23, 12
v_add_u32 v12, s30, v3
s_cmp_eq_u32 s22, 0
s_cbranch_scc1 {name}_rd
ds_write_b128 v12, v[16:19]
ds_write_b128 v12, v[20:23] offset:1024
ds_write_b128 v12, v[24:27] offset:2048
ds_write_b128 v12, v[28:31] offset:3072
s_waitcnt lgkmcnt(0)
s_barrier
s_endpgm
{name}_rd:
s_barrier
ds_read_b128 v[96:99], v12
ds_read_b128 v[100:103], v12 offset:1024
ds_read_b128 v[104:107], v12 offset:2048
ds_read_b128 v[108:111], v12 offset:3072
s_waitcnt lgkmcnt(0)""")
    for r in range(16):
        A(f"v_add_f32 v{ACC+r}, v{ACC+r}, v{96+r}")
    A("s_nop 15\ns_nop 3")
    for p in range(8):
        A(f"v_cvt_pk_bf16_f32 v{80+p}, v{ACC+2*p}, v{ACC+2*p+1}")
    A("""s_nop 1
v_permlane32_swap_b32 v80, v82
v_permlane32_swap_b32 v81, v83
v_permlane32_swap_b32 v84, v86
v_permlane32_swap_b32 v85, v87
s_waitcnt vmcnt(0)
""")
    for p in range(8):
        a, x, y = 80 + p, 160 + p, 168 + p
        A(f"""v_lshlrev_b32 v88, 16, v{a}
v_and_b32 v89, 0xffff0000, v{a}
v_lshlrev_b32 v90, 16, v{x}
v_and_b32 v91, 0xffff0000, v{x}
v_add_f32 v88, v88, v90
v_add_f32 v89, v89, v91
v_cvt_pk_bf16_f32 v92, v88, v89
v_lshlrev_b32 v88, 16, v92
v_and_b32 v89, 0xffff0000, v92
v_lshlrev_b32 v90, 16, v{y}
v_and_b32 v91, 0xffff0000, v{y}
v_add_f32 v88, v88, v90
v_add_f32 v89, v89, v91
v_cvt_pk_bf16_f32 v{a}, v88, v89""")
    A("""s_nop 1
buffer_store_dwordx4 v[80:83], v11, s[4:7], 0 offen
buffer_store_dwordx4 v[84:87], v11, s[4:7], 0 offen offset:32
""")
    A.label(f"{name}_exit")
    A("s_endpgm")
    return A.text()
def entry():
    return (NAME, k3(), 256, 512, 16384, 176)
```
